```python
import torch

def _softmax(x, axis=-1):
    return torch.softmax(x, dim=axis)
def _gelu(x):
    return torch.nn.functional.gelu(x, approximate="tanh")
def _silu(x):
    return torch.nn.functional.silu(x)
def _sigmoid(x):
    return torch.sigmoid(x)
def _layernorm(x, axis=-1, eps=1e-5):
    m = x.mean(dim=axis, keepdim=True)
    v = x.var(dim=axis, keepdim=True, unbiased=False)
    return (x - m) / torch.sqrt(v + eps)
def _scatter_add(tgt, idx, src, axis=0):
    return tgt.clone().index_add_(axis, idx, src)
def _segment_sum(src, seg, n):
    out = torch.zeros((n,) + src.shape[1:], dtype=src.dtype)
    return out.index_add_(0, seg, src)
def _pad(x, pw):
    flat = tuple(v for pair in reversed(pw) for v in pair)
    return torch.nn.functional.pad(x, flat)

kernel_name = 'concat_heads__ssm_conv_s5__linear_attn_block__prompt'

def setup_inputs():

    _w = (lambda a: (lambda t: t.to(torch.bfloat16) if t.is_floating_point() else t)(torch.as_tensor(a)))
    def _A_setup():
        B, S, D = 1, 2048, 448
        P = D
        Lambda_re = -0.5 * (lambda _x: torch.exp(torch.as_tensor(_x)))((lambda *s: torch.randn(*s, dtype=torch.bfloat16) * 0.2)(P))
        Lambda_im = (lambda *s: torch.randn(*s, dtype=torch.bfloat16) * 0.4)(P) * 1.0
        B_re = (lambda *s: torch.randn(*s, dtype=torch.bfloat16) * 0.2)(P, D) * (D ** -0.5)
        B_im = (lambda *s: torch.randn(*s, dtype=torch.bfloat16) * 0.2)(P, D) * (D ** -0.5)
        C_re = (lambda *s: torch.randn(*s, dtype=torch.bfloat16) * 0.2)(D, P) * (P ** -0.5)
        C_im = (lambda *s: torch.randn(*s, dtype=torch.bfloat16) * 0.2)(D, P) * (P ** -0.5)
        log_dt = (lambda *s: torch.randn(*s, dtype=torch.bfloat16) * 0.2)(P) * 0.3 - 2.0
        Dskip = (lambda *s: torch.randn(*s, dtype=torch.bfloat16) * 0.05)(D)
        return {
            "x": _w((lambda *s: torch.randn(*s, dtype=torch.bfloat16) * 0.05)(B, S, D)),
            "Lambda_re": _w(Lambda_re),
            "Lambda_im": _w(Lambda_im),
            "B_re": _w(B_re),
            "B_im": _w(B_im),
            "C_re": _w(C_re),
            "C_im": _w(C_im),
            "log_dt": _w(log_dt),
            "Dskip": _w(Dskip),
        }
    _A_in = _A_setup()

    def _B_setup():
        B, S, D = 1, 2048, 448
        return {
            "x": _w((lambda *s: torch.randn(*s, dtype=torch.bfloat16) * 0.05)(B, S, D)),
            "wqkv": _w((lambda *s: torch.randn(*s, dtype=torch.bfloat16) * 0.4)(D, 3 * D)),
            "wo": _w((lambda *s: torch.randn(*s, dtype=torch.bfloat16) * 0.05)(D, D)),
        }
    _B_in = _B_setup()

    return {
        "A_x": _A_in["x"],
        "A_Lambda_re": _A_in["Lambda_re"],
        "A_Lambda_im": _A_in["Lambda_im"],
        "A_B_re": _A_in["B_re"],
        "A_B_im": _A_in["B_im"],
        "A_C_re": _A_in["C_re"],
        "A_C_im": _A_in["C_im"],
        "A_log_dt": _A_in["log_dt"],
        "A_Dskip": _A_in["Dskip"],
        "B_x": _B_in["x"],
        "B_wqkv": _B_in["wqkv"],
        "B_wo": _B_in["wo"],
    }

def reference(A_x, A_Lambda_re, A_Lambda_im, A_B_re, A_B_im, A_C_re, A_C_im, A_log_dt, A_Dskip, B_x, B_wqkv, B_wo):
    def _A_ref(x, Lambda_re, Lambda_im, B_re, B_im, C_re, C_im, log_dt, Dskip):
        Bsz, L, H = x.shape
        Lam = Lambda_re + 1j * Lambda_im
        Bmat = B_re + 1j * B_im
        Cmat = C_re + 1j * C_im
        dt = torch.exp(log_dt)
        Lam_bar = torch.exp(dt * Lam)
        B_bar = ((Lam_bar - 1.0) / Lam)[:, None] * Bmat
        Bu = torch.einsum("bld,pd->blp", x + 0j, B_bar)
        h = torch.zeros_like(Bu[:, 0, :])
        hs = []
        for t in range(L):
            h = Lam_bar[None, :] * h + Bu[:, t, :]
            hs.append(h)
        hseq = torch.stack(hs, 1)
        y = 2.0 * torch.einsum("blp,dp->bld", hseq, Cmat).real + x * Dskip[None, None, :]
        return y

    def _B_ref(x, wqkv, wo):
        B, S, D = x.shape
        H = 16; Dh = D // H
        qkv = (lambda x, *d: x.permute(*d))((x @ wqkv).reshape(B, S, 3, H, Dh), 2, 0, 3, 1, 4)
        q, k, v = qkv[0], qkv[1], qkv[2]
        phi = lambda t: torch.where(t > 0, t + 1, torch.exp(t)) + 1e-6
        pq, pk = phi(q), phi(k)
        kv = torch.einsum("bhsd,bhse->bhde", pk, v)
        z = torch.einsum("bhsd->bhd", pk)
        num = torch.einsum("bhqd,bhde->bhqe", pq, kv)
        den = torch.einsum("bhqd,bhd->bhq", pq, z)[..., None] + 1e-6
        o = num / den
        return (lambda x, *d: x.permute(*d))(o, 0, 2, 1, 3).reshape(B, S, D) @ wo

    a = _A_ref(A_x, A_Lambda_re, A_Lambda_im, A_B_re, A_B_im, A_C_re, A_C_im, A_log_dt, A_Dskip)
    b = _B_ref(B_x, B_wqkv, B_wo)
    return torch.concatenate([a, b], axis=-1)
```

```python
import re

class Asm:
    def __init__(self):
        self.lines = []
    def __call__(self, s=""):
        for ln in s.split("\n"):
            ln = ln.strip()
            if ln:
                self.lines.append(ln)
    def c(self, s):
        self.lines.append("; " + s)
    def label(self, name):
        self.lines.append(name + ":")
    def text(self):
        return "\n".join(self.lines) + "\n"

TRANS = ("v_exp_f32", "v_log_f32", "v_rcp_f32", "v_rsq_f32", "v_sqrt_f32", "v_sin_f32", "v_cos_f32", "v_rcp_iflag_f32")

def regs_of(op):
    op = op.strip()
    neg = op.lstrip("-")
    if neg.startswith("abs(") or neg.startswith("|"):
        neg = neg.replace("abs(", "").replace(")", "").replace("|", "")
    op = neg
    m = re.fullmatch(r"([vas])(\d+)", op)
    if m:
        return m.group(1), {int(m.group(2))}
    m = re.fullmatch(r"([vas])\[(\d+):(\d+)\]", op)
    if m:
        return m.group(1), set(range(int(m.group(2)), int(m.group(3)) + 1))
    if op == "vcc":
        return "s", {106, 107}
    if op == "vcc_lo":
        return "s", {106}
    if op == "vcc_hi":
        return "s", {107}
    if op == "exec":
        return "s", {126, 127}
    if op == "m0":
        return "s", {124}
    return None, set()

class Ins:
    def __init__(self, line):
        self.line = line
        body = line.split(";")[0].strip()
        parts = body.split(None, 1)
        self.mn = parts[0]
        rest = parts[1] if len(parts) > 1 else ""
        ops = []; cur = ""; depth = 0
        for ch in rest:
            if ch == "[": depth += 1
            if ch == "]": depth -= 1
            if ch == "," and depth == 0:
                ops.append(cur.strip()); cur = ""
            else:
                cur += ch
        if cur.strip(): ops.append(cur.strip())
        self.mods = ""
        if ops:
            last = ops[-1].split()
            ops[-1] = last[0]
            self.mods = " ".join(last[1:])
        self.ops = ops
        mn = self.mn
        base = re.sub(r"_(e32|e64|dpp|sdwa)$", "", mn)
        self.base = base
        self.vr = set(); self.vw = set(); self.sr = set(); self.sw = set()
        self.srcC = set()
        def add(op, write):
            k, r = regs_of(op)
            if k == "v": (self.vw if write else self.vr).update(r)
            elif k == "a": (self.vw if write else self.vr).update(x + 256 for x in r)
            elif k == "s": (self.sw if write else self.sr).update(r)
        if mn.startswith("v_mfma"):
            self.kind = "mfma"
            add(ops[0], True)
            for o in ops[1:]: add(o, False)
            k, r = regs_of(ops[3])
            if k == "v": self.srcC = set(r)
            elif k == "a": self.srcC = set(x + 256 for x in r)
            self.passes = 8 if "32x32" in mn else 4
        elif mn.startswith("v_"):
            self.kind = "valu"
            if base.startswith("v_cmp"):
                add(ops[0], True)
                for o in ops[1:]: add(o, False)
                if base.startswith("v_cmpx"): self.sw.update({126, 127})
            elif base in ("v_readfirstlane_b32", "v_readlane_b32"):
                add(ops[0], True)
                for o in ops[1:]: add(o, False)
            elif base.startswith("v_permlane") and "swap" in base:
                for o in ops[:2]: add(o, True); add(o, False)
            elif base in ("v_add_co_u32", "v_sub_co_u32", "v_subrev_co_u32", "v_addc_co_u32", "v_subb_co_u32"):
                add(ops[0], True); add(ops[1], True)
                for o in ops[2:]: add(o, False)
            else:
                add(ops[0], True)
                for o in ops[1:]: add(o, False)
                if base in ("v_fmac_f32", "v_pk_fmac_f16", "v_writelane_b32", "v_mac_f32") or "dpp" in mn or "row_" in self.mods or "quad_perm" in self.mods:
                    add(ops[0], False)
                if base == "v_cndmask_b32" and len(ops) == 3:
                    self.sr.update({106, 107})
        elif mn.startswith("buffer_") or mn.startswith("global_"):
            self.kind = "vmem"
            lds = "lds" in self.mods.split()
            if "load" in mn and not lds:
                add(ops[0], True)
                for o in ops[1:]: add(o, False)
            elif "atomic" in mn and "sc0" in self.mods.split():
                add(ops[0], True)
                for o in ops: add(o, False)
            else:
                for o in ops: add(o, False)
            if lds: self.sr.add(124)
        elif mn.startswith("ds_"):
            self.kind = "ds"
            if mn.startswith("ds_read") or mn.startswith("ds_bpermute") or mn.startswith("ds_swizzle") or mn.startswith("ds_permute"):
                add(ops[0], True)
                for o in ops[1:]: add(o, False)
            else:
                for o in ops: add(o, False)
        elif mn.startswith("s_load") or mn.startswith("s_memtime") or mn.startswith("s_memrealtime") or mn.startswith("s_buffer_load"):
            self.kind = "smem"
            add(ops[0], True)
            for o in ops[1:]: add(o, False)
        elif mn in ("s_waitcnt", "s_barrier", "s_nop", "s_endpgm", "s_setprio", "s_sleep") or mn.startswith("s_cbranch") or mn == "s_branch":
            self.kind = "ctl"
        elif mn.startswith("s_"):
            self.kind = "salu"
            if mn.startswith("s_cmp"):
                for o in ops: add(o, False)
            else:
                add(ops[0], True)
                for o in ops[1:]: add(o, False)
                if "saveexec" in mn: self.sw.update({126, 127})
        else:
            raise ValueError("unknown instruction: " + line)
        self.trans = base in TRANS
        self.states = 1
        if mn == "s_nop": self.states = int(ops[0], 0) + 1
        self.wide_store = self.kind == "vmem" and ("store" in mn) and ("x3" in mn or "x4" in mn)
        self.dpp = ("dpp" in mn) or ("row_" in self.mods) or ("quad_perm" in self.mods) or ("row_bcast" in self.mods)

def fix_hazards(lines, verbose=False):
    out = []
    hist = []
    n_nops = 0
    for ln in lines:
        s = ln.strip()
        if not s or s.startswith(";") or s.startswith(".") or s.endswith(":"):
            out.append(ln); continue
        ins = Ins(s)
        need = 0
        for p, age in hist:
            req = 0
            if p.kind == "mfma":
                pw = p.vw
                big = {4: 8, 8: 12}[p.passes]
                ovl = {4: 6, 8: 10}[p.passes]
                war = {4: 3, 8: 7}[p.passes]
                if ins.kind == "mfma":
                    ab = ins.vr - ins.srcC
                    k2, r1 = regs_of(ins.ops[1]); k3, r2 = regs_of(ins.ops[2])
                    abregs = set()
                    for k, r in ((k2, r1), (k3, r2)):
                        if k == "v": abregs |= r
                        elif k == "a": abregs |= {x + 256 for x in r}
                    if abregs & pw: req = max(req, big)
                    if ins.srcC & pw:
                        if ins.srcC == pw and ins.passes == p.passes: pass
                        else: req = max(req, ovl)
                    elif ins.vw & pw:
                        req = max(req, ovl)
                elif ins.kind in ("valu",):
                    if (ins.vr | ins.vw) & pw: req = max(req, big)
                    if ins.vw & p.srcC: req = max(req, war)
                elif ins.kind in ("vmem", "ds"):
                    if (ins.vr | ins.vw) & pw: req = max(req, big)
            if p.kind == "valu":
                if ins.kind == "mfma" and (ins.vr & p.vw): req = max(req, 2)
                if p.trans and ins.kind == "valu" and not ins.trans and (ins.vr & p.vw): req = max(req, 1)
                if p.trans and ins.kind == "valu" and ins.trans and (ins.vr & p.vw): req = max(req, 1)
                if ins.kind == "valu" and ins.base in ("v_readfirstlane_b32", "v_readlane_b32") and (ins.vr & p.vw): req = max(req, 1)
                if ins.kind == "valu" and ins.base.startswith("v_permlane") and (ins.vr & p.vw): req = max(req, 2)
                if ins.kind == "valu" and ins.dpp and (ins.vr & p.vw): req = max(req, 2)
                if p.sw:
                    if ins.kind == "valu" and (ins.sr & p.sw): req = max(req, 2)
                    if ins.kind == "vmem" and (ins.sr & p.sw): req = max(req, 5)
                    if ins.base in ("v_readlane_b32", "v_writelane_b32") and (ins.sr & p.sw): req = max(req, 4)
                    if ({126, 127} & p.sw):
                        if ins.kind == "mfma": req = max(req, 4)
                        if ins.dpp: req = max(req, 5)
                        if ins.base.startswith("v_permlane") or ins.base in ("v_readfirstlane_b32", "v_readlane_b32"): req = max(req, 4)
            if p.kind == "salu" and 124 in p.sw and ins.kind == "vmem" and 124 in ins.sr: req = max(req, 1)
            if p.wide_store:
                data = p.vr
                if ins.vw & data:
                    req = max(req, 2 if ins.kind == "valu" else 1)
            if req > age: need = max(need, req - age)
        while need > 0:
            k = min(need, 16)
            out.append("s_nop %d" % (k - 1)); n_nops += 1
            for h in hist: h[1] += k
            need -= k
        out.append(ln)
        for h in hist: h[1] += ins.states
        hist.append([ins, 0])
        hist = [h for h in hist if h[1] < 24]
    if verbose: print("inserted", n_nops, "s_nop")
    return out
```

```python
from asmlib import Asm, fix_hazards

KNAME = "concat_heads__ssm_conv_s5__linear_attn_block__prompt"
K_XA, K_LRE, K_LIM, K_BRE, K_BIM, K_CRE, K_CIM, K_LDT, K_DSK, K_XB, K_WQKV, K_WO, K_OUT, K_DBG, K_WS = [8*i for i in range(15)]
WS_E   = 0x000000
WS_KV  = 0x020000
WS_KVP = 0x040000
WS_PQ  = 0x200000
WS_U   = 0x400000
WS_SIZE = 0x800000
X_BYTES = 2048*448*2
W_BYTES = 448*448*2
WQKV_BYTES = 448*1344*2
OUT_BYTES = 2048*896*4
LOG2E = 0x3fb8aa3b
INV2PI = 0x3e22f983

def srd(a, dst, lo, hi, size):
    a("s_mov_b32 s%d, s%d" % (dst, lo))
    a("s_mov_b32 s%d, s%d" % (dst+1, hi))
    a("s_mov_b32 s%d, 0x%x" % (dst+2, size))
    a("s_mov_b32 s%d, 0x20000" % (dst+3))

def srd_off(a, dst, lo, hi, off, size):
    a("s_add_u32 s%d, s%d, 0x%x" % (dst, lo, off))
    a("s_addc_u32 s%d, s%d, 0" % (dst+1, hi))
    a("s_mov_b32 s%d, 0x%x" % (dst+2, size))
    a("s_mov_b32 s%d, 0x20000" % (dst+3))

def vr(a, n=1):
    return "v%d" % a if n == 1 else "v[%d:%d]" % (a, a+n-1)

def mfma(a, d, x, y, c):
    cs = "0" if c is None else vr(c, 16)
    a("v_mfma_f32_32x32x16_bf16 %s, %s, %s, %s" % (vr(d, 16), vr(x, 4), vr(y, 4), cs))

def cmul(a, d, x, y, t=None):
    a("v_mul_f32 v%d, v%d, v%d" % (d, x, y))
    a("v_mul_f32 v%d, v%d, v%d" % (d+1, x, y+1))
    a("v_fma_f32 v%d, -v%d, v%d, v%d" % (d, x+1, y+1, d))
    a("v_fma_f32 v%d, v%d, v%d, v%d" % (d+1, x+1, y, d+1))

def cfma(a, d, x, y, z):
    a("v_fma_f32 v%d, v%d, v%d, v%d" % (d, x, y, z))
    a("v_fma_f32 v%d, v%d, v%d, v%d" % (d+1, x, y+1, z+1))
    a("v_fma_f32 v%d, -v%d, v%d, v%d" % (d, x+1, y+1, d))
    a("v_fma_f32 v%d, v%d, v%d, v%d" % (d+1, x+1, y, d+1))

def csq(a, d, x):
    a("v_mul_f32 v%d, v%d, v%d" % (d, x, x))
    a("v_mul_f32 v%d, v%d, v%d" % (d+1, x, x+1))
    a("v_fma_f32 v%d, -v%d, v%d, v%d" % (d, x+1, x+1, d))
    a("v_add_f32 v%d, v%d, v%d" % (d+1, d+1, d+1))

def descriptor(name, vgpr=256, sgpr=96):
    return """.amdhsa_kernel %s
  .amdhsa_next_free_vgpr %d
  .amdhsa_next_free_sgpr %d
  .amdhsa_accum_offset %d
  .amdhsa_group_segment_fixed_size 0
  .amdhsa_kernarg_size 120
  .amdhsa_user_sgpr_count 2
  .amdhsa_user_sgpr_kernarg_segment_ptr 1
  .amdhsa_system_sgpr_workgroup_id_x 1
  .amdhsa_float_denorm_mode_32 3
.end_amdhsa_kernel
""" % (name, vgpr, sgpr, (vgpr+3)//4*4)
```

```python
from common import *

def a1_loader(a, P, nslot=4):
    a.c("---- A1 loader ----")
    a("s_load_dwordx2 s[24:25], s[0:1], %d" % K_XA)
    a("s_load_dwordx4 s[28:31], s[0:1], %d" % K_BRE)
    a("s_sub_u32 s7, s6, 4")
    a("v_lshrrev_b32 v1, 3, v0")
    a("v_and_b32 v2, 7, v0")
    a("v_lshrrev_b32 v3, 1, v1")
    a("v_xor_b32 v4, v2, v3")
    a("v_xor_b32 v5, 4, v4")
    a("v_lshlrev_b32 v4, 4, v4")
    a("v_lshlrev_b32 v5, 4, v5")
    a("v_lshrrev_b32 v6, 2, v1")
    a("v_lshlrev_b32 v6, 5, v6")
    a("v_and_b32 v7, 1, v1")
    a("v_lshlrev_b32 v7, 4, v7")
    a("v_add_u32 v6, v6, v7")
    a("v_and_b32 v7, 1, v3")
    a("v_add_u32 v6, v6, v7")
    a("s_lshr_b32 s26, s7, 1")
    a("s_and_b32 s27, s7, 1")
    a("s_lshl_b32 s3, s26, 6")
    a("s_lshl_b32 s40, s27, 3")
    a("s_add_u32 s3, s3, s40")
    a("s_lshl_b32 s40, s4, 7")
    a("s_add_u32 s3, s3, s40")
    a("v_add_u32 v6, s3, v6")
    a("v_mul_u32_u24 v6, 896, v6")
    for q in range(4):
        a("v_add_u32 v%d, %d, v6" % (10+q, 2*q*896))
        a("v_add_u32 v%d, v%d, v%d" % (10+q, 10+q, 4+(q & 1)))
    a("s_lshl_b32 s3, s5, 6")
    a("s_lshl_b32 s40, s27, 5")
    a("s_add_u32 s3, s3, s40")
    a("v_add_u32 v6, s3, v1")
    a("v_mul_u32_u24 v6, 896, v6")
    for q in range(4):
        a("v_add_u32 v%d, %d, v6" % (14+q, 8*q*896))
        a("v_add_u32 v%d, v%d, v%d" % (14+q, 14+q, 4+(q & 1)))
    a("s_lshl_b32 s40, s7, 12")
    a("s_waitcnt lgkmcnt(0)")
    srd(a, 8, 24, 25, X_BYTES)
    a("s_cmp_eq_u32 s26, 0")
    a("s_cselect_b32 s12, s28, s30")
    a("s_cselect_b32 s13, s29, s31")
    a("s_mov_b32 s14, 0x%x" % W_BYTES)
    a("s_mov_b32 s15, 0x20000")
    def issue(st):
        slot = st % nslot
        a("s_movk_i32 s41, %d" % (128*st))
        for q in range(4):
            a("s_add_u32 m0, s40, %d" % (slot*32768 + q*1024))
            a("s_nop 0")
            a("buffer_load_dwordx4 v%d, s[8:11], s41 offen lds" % (10+q))
        for q in range(4):
            a("s_add_u32 m0, s40, %d" % (slot*32768 + 16384 + q*1024))
            a("s_nop 0")
            a("buffer_load_dwordx4 v%d, s[12:15], s41 offen lds" % (14+q))
    la = nslot - 1
    for st in range(la): issue(st)
    for s in range(7):
        issued = min(s + la - 1, 6)
        a("s_waitcnt vmcnt(%d)" % (8*(issued - s)))
        a("s_barrier")
        if s + la <= 6: issue(s + la)

AX0, AW0, AX1, AW1 = 16, 20, 24, 28
FX = 32
ACC = 64
VL, VG, VL16, VL128, VW0, VW1 = 128, 130, 132, 134, 136, 138
VT = 140

def accreg(part, m): return ACC + 32*part + 16*m

def a1_params(a):
    a("s_load_dwordx4 s[24:27], s[0:1], %d" % K_LRE)
    a("s_load_dwordx2 s[28:29], s[0:1], %d" % K_LDT)
    a("s_lshl_b32 s3, s5, 6")
    a("s_and_b32 s7, s6, 1")
    a("s_lshl_b32 s7, s7, 5")
    a("s_add_u32 s3, s3, s7")
    a("v_and_b32 v1, 31, v0")
    a("v_add_u32 v1, s3, v1")
    a("v_lshlrev_b32 v2, 1, v1")
    a("s_waitcnt lgkmcnt(0)")
    a("global_load_ushort v3, v2, s[24:25]")
    a("global_load_ushort v4, v2, s[26:27]")
    a("global_load_ushort v5, v2, s[28:29]")
    a("s_waitcnt vmcnt(0)")
    a("v_lshlrev_b32 v3, 16, v3")
    a("v_lshlrev_b32 v4, 16, v4")
    a("v_lshlrev_b32 v5, 16, v5")
    a("v_mul_f32 v5, 0x%x, v5" % LOG2E)
    a("v_exp_f32 v5, v5")
    a("v_cvt_pk_bf16_f32 v5, v5, v5")
    a("v_lshlrev_b32 v5, 16, v5")
    a("v_mul_f32 v6, v5, v3")
    a("v_mul_f32 v7, v5, v4")
    a("v_mul_f32 v6, 0x%x, v6" % LOG2E)
    a("v_exp_f32 v6, v6")
    a("v_mul_f32 v7, 0x%x, v7" % INV2PI)
    a("v_fract_f32 v7, v7")
    a("v_cos_f32 v8, v7")
    a("v_sin_f32 v9, v7")
    a("v_mul_f32 v%d, v6, v8" % VL)
    a("v_mul_f32 v%d, v6, v9" % (VL+1))
    a("v_add_f32 v6, -1.0, v%d" % VL)
    a("v_mul_f32 v7, v3, v3")
    a("v_fma_f32 v7, v4, v4, v7")
    a("v_rcp_f32 v7, v7")
    a("v_mul_f32 v8, v6, v3")
    a("v_fma_f32 v8, v%d, v4, v8" % (VL+1))
    a("v_mul_f32 v9, v%d, v3" % (VL+1))
    a("v_fma_f32 v9, -v6, v4, v9")
    a("v_add_f32 v7, v7, v7")
    a("v_mul_f32 v%d, v8, v7" % VG)
    a("v_mul_f32 v%d, v9, v7" % (VG+1))
    csq(a, 2, VL)
    csq(a, 4, 2)
    csq(a, 2, 4)
    csq(a, VL16, 2)
    csq(a, 2, VL16)
    csq(a, 4, 2)
    csq(a, VL128, 4)
    a("v_cmp_gt_u32 vcc, 32, v0")
    a("v_cndmask_b32 v6, v2, 1.0, vcc")
    a("v_cndmask_b32 v7, v3, 0, vcc")
    a("s_lshr_b32 s7, s6, 1")
    a("s_cmp_eq_u32 s7, 0")
    a("s_cselect_b64 vcc, -1, 0")
    a("v_cndmask_b32 v8, v4, 1.0, vcc")
    a("v_cndmask_b32 v9, v5, 0, vcc")
    cmul(a, VW0, 6, 8)
    cmul(a, VW1, VW0, VL16)

def a1_compute(a, P, mode, nslot=4):
    a.c("---- A1 compute (mode %s) ----" % mode)
    a("s_load_dwordx2 s[30:31], s[0:1], %d" % K_WS)
    a1_params(a)
    a("v_and_b32 v1, 31, v0")
    a("v_lshrrev_b32 v2, 5, v0")
    a("v_lshrrev_b32 v3, 1, v1")
    a("v_and_b32 v3, 7, v3")
    a("s_lshr_b32 s7, s6, 1")
    a("s_and_b32 s3, s6, 1")
    a("s_lshl_b32 s7, s7, 13")
    a("s_lshl_b32 s3, s3, 12")
    a("s_add_u32 s3, s3, 16384")
    a("v_lshlrev_b32 v4, 7, v1")
    for ks in range(4):
        a("v_add_u32 v5, %d, v2" % (2*ks))
        a("v_xor_b32 v5, v5, v3")
        a("v_lshlrev_b32 v5, 4, v5")
        a("v_add_u32 v5, v5, v4")
        a("v_add_u32 v%d, s7, v5" % (AX0+ks))
        a("v_add_u32 v%d, s3, v5" % (AW0+ks))
        a("v_add_u32 v%d, 0x10000, v%d" % (AX1+ks, AX0+ks))
        a("v_add_u32 v%d, 0x10000, v%d" % (AW1+ks, AW0+ks))
    def reads(s, ks):
        slot = s % nslot
        b = (4*s + ks) & 1
        ax = (AX0 if slot < 2 else AX1) + ks
        aw = (AW0 if slot < 2 else AW1) + ks
        o = (slot & 1)*32768
        for m in range(2):
            a("ds_read_b128 %s, v%d offset:%d" % (vr(FX+16*b+4*m, 4), ax, o + m*4096))
        for part in range(2):
            a("ds_read_b128 %s, v%d offset:%d" % (vr(FX+16*b+8+4*part, 4), aw, o + part*8192))
    def mm(s, ks):
        b = (4*s + ks) & 1
        first = (s == 0 and ks == 0)
        for part in range(2):
            for m in range(2):
                d = accreg(part, m)
                mfma(a, d, FX+16*b+4*m, FX+16*b+8+4*part, None if first else d)
    a("s_barrier")
    reads(0, 0)
    for s in range(7):
        for ks in range(3):
            reads(s, ks+1)
            a("s_waitcnt lgkmcnt(4)")
            mm(s, ks)
        a("s_waitcnt lgkmcnt(0)")
        if s < 6:
            a("s_barrier")
            reads(s+1, 0)
        mm(s, 3)
    a.c("pass 1")
    E0, E1 = VT, VT+4
    def pair(part, pos):
        m, aa = pos >> 3, pos & 7
        return accreg(part, m) + 2*aa
    cur = None
    for pos in range(1, 16):
        pr = pair(0, 0) if pos == 1 else cur
        pi = pair(1, 0) if pos == 1 else cur+2
        nxt = E0 if (pos & 1) else E1
        a("v_pk_fma_f32 %s, %s, %s, %s op_sel:[0,0,0] op_sel_hi:[0,1,1]" % (vr(nxt,2), vr(VL,2), vr(pr,2), vr(pair(0,pos),2)))
        a("v_pk_fma_f32 %s, %s, %s, %s op_sel:[0,0,0] op_sel_hi:[0,1,1]" % (vr(nxt+2,2), vr(VL,2), vr(pi,2), vr(pair(1,pos),2)))
        a("v_pk_fma_f32 %s, %s, %s, %s op_sel:[1,0,0] op_sel_hi:[1,1,1] neg_lo:[1,0,0] neg_hi:[1,0,0]" % (vr(nxt,2), vr(VL,2), vr(pi,2), vr(nxt,2)))
        a("v_pk_fma_f32 %s, %s, %s, %s op_sel:[1,0,0] op_sel_hi:[1,1,1]" % (vr(nxt+2,2), vr(VL,2), vr(pr,2), vr(nxt+2,2)))
        cur = nxt
    a("v_mov_b32 v%d, v%d" % (VT+8, cur))
    a("v_mov_b32 v%d, v%d" % (VT+9, cur+2))
    a("v_mov_b32 v%d, v%d" % (VT+10, cur+1))
    a("v_mov_b32 v%d, v%d" % (VT+11, cur+3))
    a("v_and_b32 v1, 31, v0")
    a("v_lshrrev_b32 v2, 5, v0")
    a("s_and_b32 s3, s6, 1")
    a("s_lshl_b32 s3, s3, 8")
    a("v_lshlrev_b32 v3, 3, v1")
    a("v_add_u32 v3, s3, v3")
    a("s_lshr_b32 s7, s6, 1")
    a("s_lshl_b32 s7, s7, 11")
    a("v_lshlrev_b32 v4, 10, v2")
    a("v_add_u32 v4, v4, v3")
    a("v_add_u32 v4, s7, v4")
    a("ds_write_b64 v4, %s" % vr(VT+8, 2))
    a("ds_write_b64 v4, %s offset:512" % vr(VT+10, 2))
    a("s_waitcnt lgkmcnt(0)")
    a("s_barrier")
    EE = VT+12
    for sg in range(8):
        a("ds_read_b64 %s, v3 offset:%d" % (vr(EE+2*sg, 2), 512*sg))
    a("s_waitcnt lgkmcnt(0)")
    for sg in range(1, 8):
        cfma(a, EE+2*sg, VL16, EE+2*(sg-1), EE+2*sg)
    if mode == "E":
        a("s_waitcnt lgkmcnt(0)")
        srd_off(a, 20, 30, 31, WS_E, 16*448*8)
        a("s_lshr_b32 s7, s6, 1")
        a("s_cmp_eq_u32 s7, 0")
        a("s_cbranch_scc0 %s_done" % P)
        a("s_mul_i32 s3, s4, 448")
        a("s_lshl_b32 s7, s5, 6")
        a("s_add_u32 s3, s3, s7")
        a("s_lshl_b32 s3, s3, 3")
        a("v_add_u32 v3, s3, v3")
        a("v_cmp_gt_u32 vcc, 32, v0")
        a("s_and_saveexec_b64 s[42:43], vcc")
        a("buffer_store_dwordx2 %s, v3, s[20:23], 0 offen" % vr(EE+14, 2))
        a("s_waitcnt vmcnt(0)")
        a.label("%s_done" % P)
        return
    EL = VT+28
    srd_off(a, 20, 30, 31, WS_E, 16*448*8)
    a("s_mul_i32 s3, s4, 448")
    a("s_lshl_b32 s7, s5, 6")
    a("s_add_u32 s3, s3, s7")
    a("s_lshl_b32 s3, s3, 3")
    a("v_add_u32 v5, s3, v3")
    for j in range(1, 16):
        a("v_subrev_u32 v6, %d, v5" % (3584*j))
        a("buffer_load_dwordx2 %s, v6, s[20:23], 0 offen" % vr(EL+2*(j-1), 2))
    SO0, SO1 = VT+8, VT+10
    a("v_cmp_gt_u32 vcc, 32, v0")
    a("s_lshr_b32 s7, s6, 1")
    a("s_cmp_eq_u32 s7, 0")
    a("s_cbranch_scc0 %s_th1" % P)
    a("v_cndmask_b32 v%d, v%d, 0, vcc" % (SO0, EE+2))
    a("v_cndmask_b32 v%d, v%d, 0, vcc" % (SO0+1, EE+3))
    a("v_cndmask_b32 v%d, v%d, v%d, vcc" % (SO1, EE+4, EE+0))
    a("v_cndmask_b32 v%d, v%d, v%d, vcc" % (SO1+1, EE+5, EE+1))
    a("s_branch %s_thj" % P)
    a.label("%s_th1" % P)
    a("v_cndmask_b32 v%d, v%d, v%d, vcc" % (SO0, EE+10, EE+6))
    a("v_cndmask_b32 v%d, v%d, v%d, vcc" % (SO0+1, EE+11, EE+7))
    a("v_cndmask_b32 v%d, v%d, v%d, vcc" % (SO1, EE+12, EE+8))
    a("v_cndmask_b32 v%d, v%d, v%d, vcc" % (SO1+1, EE+13, EE+9))
    a.label("%s_thj" % P)
    H0, H1 = VT, VT+2
    a("s_waitcnt vmcnt(0)")
    cur = EL + 2*14
    for j in range(14, 0, -1):
        cfma(a, EL+2*(j-1), VL128, cur, EL+2*(j-1))
        cur = EL+2*(j-1)
    cfma(a, SO0, VW0, cur, SO0)
    cfma(a, SO1, VW1, cur, SO1)
    HP = VT
    a("v_mov_b32 v%d, v%d" % (HP, SO0))
    a("v_mov_b32 v%d, v%d" % (HP+1, SO1))
    a("v_mov_b32 v%d, v%d" % (HP+2, SO0+1))
    a("v_mov_b32 v%d, v%d" % (HP+3, SO1+1))
    a.c("pass 2")
    OUTR, OUTI = VT+12, VT+28
    T1, T2 = VT+4, VT+6
    for pos in range(16):
        pr = HP if pos == 0 else pair(0, pos-1)
        pi = HP+2 if pos == 0 else pair(1, pos-1)
        br, bi = pair(0, pos), pair(1, pos)
        a("v_pk_fma_f32 %s, %s, %s, %s op_sel:[0,0,0] op_sel_hi:[0,1,1]" % (vr(br,2), vr(VL,2), vr(pr,2), vr(br,2)))
        a("v_pk_fma_f32 %s, %s, %s, %s op_sel:[0,0,0] op_sel_hi:[0,1,1]" % (vr(bi,2), vr(VL,2), vr(pi,2), vr(bi,2)))
        a("v_pk_fma_f32 %s, %s, %s, %s op_sel:[1,0,0] op_sel_hi:[1,1,1] neg_lo:[1,0,0] neg_hi:[1,0,0]" % (vr(br,2), vr(VL,2), vr(pi,2), vr(br,2)))
        a("v_pk_fma_f32 %s, %s, %s, %s op_sel:[1,0,0] op_sel_hi:[1,1,1]" % (vr(bi,2), vr(VL,2), vr(pr,2), vr(bi,2)))
        a("v_pk_mul_f32 %s, %s, %s op_sel:[0,0] op_sel_hi:[0,1]" % (vr(T1,2), vr(VG,2), vr(br,2)))
        a("v_pk_mul_f32 %s, %s, %s op_sel:[0,0] op_sel_hi:[0,1] neg_lo:[1,0] neg_hi:[1,0]" % (vr(T2,2), vr(VG,2), vr(bi,2)))
        a("v_pk_fma_f32 %s, %s, %s, %s op_sel:[1,0,0] op_sel_hi:[1,1,1] neg_lo:[1,0,0] neg_hi:[1,0,0]" % (vr(T1,2), vr(VG,2), vr(bi,2), vr(T1,2)))
        a("v_pk_fma_f32 %s, %s, %s, %s op_sel:[1,0,0] op_sel_hi:[1,1,1] neg_lo:[1,0,0] neg_hi:[1,0,0]" % (vr(T2,2), vr(VG,2), vr(br,2), vr(T2,2)))
        a("v_cvt_pk_bf16_f32 v%d, v%d, v%d" % (OUTR+pos, T1, T1+1))
        a("v_cvt_pk_bf16_f32 v%d, v%d, v%d" % (OUTI+pos, T2, T2+1))
    a("s_mul_i32 s3, s6, 9216")
    a("s_add_u32 s3, s3, 4096")
    a("v_and_b32 v1, 31, v0")
    a("v_lshrrev_b32 v2, 5, v0")
    a("v_mul_u32_u24 v3, 144, v1")
    a("v_lshlrev_b32 v4, 6, v2")
    a("v_add_u32 v3, v3, v4")
    a("v_add_u32 v3, s3, v3")
    for part in range(2):
        for q in range(4):
            a("ds_write_b128 v3, %s offset:%d" % (vr((OUTR, OUTI)[part]+4*q, 4), part*4608 + 16*q))
    a("v_lshrrev_b32 v4, 4, v0")
    a("v_and_b32 v5, 1, v4")
    a("v_lshrrev_b32 v4, 1, v4")
    a("v_and_b32 v6, 15, v0")
    a("v_lshrrev_b32 v6, 2, v6")
    a("v_and_b32 v7, 3, v0")
    a("v_lshlrev_b32 v4, 3, v4")
    a("v_add_u32 v4, v4, v6")
    a("v_mul_u32_u24 v4, 144, v4")
    a("v_lshlrev_b32 v5, 5, v5")
    a("v_lshlrev_b32 v7, 3, v7")
    a("v_add_u32 v4, v4, v5")
    a("v_add_u32 v4, v4, v7")
    a("v_add_u32 v4, s3, v4")
    srd(a, 16, 30, 31, WS_SIZE)
    a("s_lshr_b32 s7, s6, 1")
    a("s_lshl_b32 s7, s7, 1")
    a("s_lshl_b32 s3, s4, 2")
    a("s_add_u32 s3, s3, s7")
    a("s_mul_i32 s3, s3, 56")
    a("s_lshl_b32 s7, s5, 3")
    a("s_add_u32 s3, s3, s7")
    a("s_and_b32 s7, s6, 1")
    a("s_lshl_b32 s7, s7, 1")
    a("s_add_u32 s3, s3, s7")
    a("s_lshl_b32 s3, s3, 10")
    a("s_add_u32 s44, s3, 0x%x" % WS_U)
    a("v_lshlrev_b32 v5, 4, v0")
    a("s_waitcnt lgkmcnt(0)")
    FR = 64
    n = 0
    for part in range(2):
        for T in range(2):
            for sub in range(2):
                for rd in range(2):
                    a("ds_read_b64_tr_b16 %s, v4 offset:%d" % (vr(FR+4*n+2*rd, 2), part*4608 + (16*sub+4*rd)*144 + 64*T))
                n += 1
    n = 0
    for part in range(2):
        for T in range(2):
            for sub in range(2):
                a("s_add_u32 s45, s44, %d" % ((T*56 + 4*part + sub)*1024))
                a("s_waitcnt lgkmcnt(%d)" % min(15, 2*(7-n)))
                a("buffer_store_dwordx4 %s, v5, s[16:19], s45 offen" % vr(FR+4*n, 4))
                n += 1
    a("s_waitcnt vmcnt(0)")
```

```python
from common import *

SLOT = 40960

def b1_loader(a, P, nslot=4):
    a.c("---- B1 loader ----")
    a("s_load_dwordx4 s[24:27], s[0:1], %d" % K_XB)
    a("s_sub_u32 s7, s6, 4")
    a("v_lshrrev_b32 v1, 3, v0")
    a("v_and_b32 v2, 7, v0")
    a("v_lshrrev_b32 v3, 1, v1")
    a("v_xor_b32 v4, v2, v3")
    a("v_xor_b32 v5, 4, v4")
    a("v_lshlrev_b32 v4, 4, v4")
    a("v_lshlrev_b32 v5, 4, v5")
    a("s_lshl_b32 s3, s4, 7")
    a("s_lshl_b32 s40, s7, 5")
    a("s_add_u32 s3, s3, s40")
    a("v_add_u32 v6, s3, v1")
    a("v_mul_u32_u24 v6, 896, v6")
    for q in range(4):
        a("v_add_u32 v%d, %d, v6" % (10+q, 8*q*896))
        a("v_add_u32 v%d, v%d, v%d" % (10+q, 10+q, 4+(q & 1)))
    a("v_and_b32 v7, 1, v3")
    a("v_lshlrev_b32 v7, 2, v7")
    a("v_xor_b32 v7, v7, v2")
    a("v_lshlrev_b32 v7, 4, v7")
    a("s_lshl_b32 s3, s7, 4")
    a("v_add_u32 v6, s3, v1")
    a("v_mul_u32_u24 v6, 2688, v6")
    a("v_add_u32 v6, v6, v7")
    a("s_mul_i32 s3, s5, 112")
    a("v_add_u32 v14, s3, v6")
    a("s_lshl_b32 s40, s7, 12")
    a("s_lshl_b32 s42, s7, 11")
    a("s_waitcnt lgkmcnt(0)")
    srd(a, 8, 24, 25, X_BYTES)
    srd(a, 12, 26, 27, WQKV_BYTES)
    def issue(st):
        slot = st % nslot
        a("s_movk_i32 s41, %d" % (128*st))
        for q in range(4):
            a("s_add_u32 m0, s40, %d" % (slot*SLOT + q*1024))
            a("s_nop 0")
            a("buffer_load_dwordx4 v%d, s[8:11], s41 offen lds" % (10+q))
        for sec in range(3):
            for q in range(2):
                a("s_add_u32 m0, s42, %d" % (slot*SLOT + 16384 + sec*8192 + q*1024))
                a("s_mov_b32 s41, %d" % (st*64*2688 + q*8*2688 + sec*896))
                a("buffer_load_dwordx4 v14, s[12:15], s41 offen lds")
    la = nslot - 1
    for st in range(la): issue(st)
    for s in range(7):
        issued = min(s + la - 1, 6)
        a("s_waitcnt vmcnt(%d)" % (10*(issued - s)))
        a("s_barrier")
        if s + la <= 6: issue(s + la)

AX = 16
AW = 20
AXS, AWS = 21, 25
FX = 32
QT, KK, VV = 72, 104, 136
KV = 168
VT = 184

def b1_compute(a, P, mode="partial", nslot=4):
    a.c("---- B1 compute ----")
    a("s_load_dwordx2 s[30:31], s[0:1], %d" % K_WS)
    a("v_and_b32 v1, 31, v0")
    a("v_lshrrev_b32 v2, 5, v0")
    a("v_lshrrev_b32 v3, 1, v1")
    a("v_and_b32 v3, 7, v3")
    a("s_lshr_b32 s7, s6, 1")
    a("s_lshl_b32 s7, s7, 13")
    a("v_lshlrev_b32 v4, 7, v1")
    for ks in range(4):
        a("v_add_u32 v5, %d, v2" % (2*ks))
        a("v_xor_b32 v5, v5, v3")
        a("v_lshlrev_b32 v5, 4, v5")
        a("v_add_u32 v5, v5, v4")
        a("v_add_u32 v%d, s7, v5" % (AX+ks))
    a("v_lshrrev_b32 v4, 4, v0")
    a("v_and_b32 v5, 1, v4")
    a("v_lshrrev_b32 v4, 1, v4")
    a("v_and_b32 v6, 15, v0")
    a("v_lshrrev_b32 v6, 2, v6")
    a("v_and_b32 v7, 3, v0")
    a("v_lshlrev_b32 v4, 3, v4")
    a("v_add_u32 v4, v4, v6")
    a("v_lshlrev_b32 v4, 7, v4")
    a("v_lshlrev_b32 v5, 5, v5")
    a("v_lshlrev_b32 v7, 3, v7")
    a("v_add_u32 v5, v5, v7")
    a("s_and_b32 s3, s6, 1")
    a("s_mul_i32 s3, s3, 56")
    a("v_add_u32 v5, s3, v5")
    a("v_lshrrev_b32 v6, 1, v6")
    a("v_lshlrev_b32 v6, 6, v6")
    a("v_xor_b32 v5, v5, v6")
    a("v_add_u32 v4, v4, v5")
    a("v_add_u32 v%d, 16384, v4" % AW)
    def setslot(s):
        o = (s % nslot)*SLOT
        for ks in range(4):
            a("v_add_u32 v%d, %d, v%d" % (AXS+ks, o, AX+ks))
        a("v_add_u32 v%d, %d, v%d" % (AWS, o, AW))
    def reads(s, ks):
        b = (4*s + ks) & 1
        f = FX + 20*b
        for m in range(2):
            a("ds_read_b128 %s, v%d offset:%d" % (vr(f+4*m, 4), AXS+ks, m*4096))
        for sec in range(3):
            for rd in range(2):
                a("ds_read_b64_tr_b16 %s, v%d offset:%d" % (vr(f+8+4*sec+2*rd, 2), AWS, sec*8192 + ks*2048 + rd*512))
    def mm(s, ks):
        b = (4*s + ks) & 1
        f = FX + 20*b
        first = (s == 0 and ks == 0)
        for m in range(2):
            mfma(a, KK+16*m, f+4*m, f+12, None if first else KK+16*m)
            mfma(a, VV+16*m, f+4*m, f+16, None if first else VV+16*m)
            mfma(a, QT+16*m, f+8, f+4*m, None if first else QT+16*m)
    a("s_waitcnt lgkmcnt(0)")
    setslot(0)
    a("s_barrier")
    reads(0, 0)
    for s in range(7):
        for ks in range(3):
            reads(s, ks+1)
            a("s_waitcnt lgkmcnt(8)")
            mm(s, ks)
        a("s_waitcnt lgkmcnt(0)")
        if s < 6:
            setslot(s+1)
            a("s_barrier")
            reads(s+1, 0)
        mm(s, 3)
    CL2E, CEPS = 50, 52
    a("s_mov_b32 s50, 0x%x" % LOG2E)
    a("s_mov_b32 s51, 0x%x" % LOG2E)
    a("s_mov_b32 s52, 0x358637bd")
    T = VT
    def phi(base):
        for i in range(0, 16, 2):
            a("v_pk_mul_f32 %s, %s, s[50:51]" % (vr(T, 2), vr(base+i, 2)))
            a("v_max_f32 v%d, s52, v%d" % (base+i, base+i))
            a("v_max_f32 v%d, s52, v%d" % (base+i+1, base+i+1))
            a("v_exp_f32_e64 v%d, v%d clamp" % (T, T))
            a("v_exp_f32_e64 v%d, v%d clamp" % (T+1, T+1))
            a("v_pk_add_f32 %s, %s, %s" % (vr(T, 2), vr(T, 2), vr(base+i, 2)))
            a("v_cvt_pk_bf16_f32 v%d, v%d, v%d" % (base+i//2, T, T+1))
    a("v_and_b32 v1, 31, v0")
    a("v_cmp_lt_u32 s[54:55], 27, v1")
    a("v_cmp_eq_u32 vcc, 28, v1")
    a("v_mov_b32 v2, 0")
    a("v_mov_b32 v3, 0x3f803f80")
    a("v_cndmask_b32 v2, v2, v3, vcc")
    for m in range(2):
        phi(KK+16*m)
        for i in range(8):
            a("v_cvt_pk_bf16_f32 v%d, v%d, v%d" % (VV+16*m+i, VV+16*m+2*i, VV+16*m+2*i+1))
            a("v_cndmask_b32 v%d, v%d, v2, s[54:55]" % (VV+16*m+i, VV+16*m+i))
    for m in range(2):
        for s in range(2):
            mfma(a, KV, KK+16*m+4*s, VV+16*m+4*s, None if (m == 0 and s == 0) else KV)
    srd(a, 16, 30, 31, WS_SIZE)
    a("s_mov_b32 s56, 0")
    a("s_mov_b32 s57, -1")
    a("s_lshr_b32 s7, s6, 1")
    a("s_lshl_b32 s7, s7, 1")
    a("s_lshl_b32 s3, s4, 2")
    a("s_add_u32 s3, s3, s7")
    a("s_lshl_b32 s3, s3, 4")
    a("s_lshl_b32 s7, s5, 1")
    a("s_add_u32 s3, s3, s7")
    a("s_and_b32 s7, s6, 1")
    a("s_add_u32 s3, s3, s7")
    a("s_lshl_b32 s3, s3, 11")
    a("s_add_u32 s44, s3, 0x%x" % WS_PQ)
    a("v_lshlrev_b32 v5, 4, v0")
    a("v_mov_b32 v6, 0")
    for m in range(2):
        phi(QT+16*m)
        a("v_cndmask_b32 v%d, v%d, v6, s[56:57]" % (QT+16*m+6, QT+16*m+6))
        a("v_cndmask_b32 v%d, v%d, v6, s[56:57]" % (QT+16*m+7, QT+16*m+7))
        for s in range(2):
            a("s_add_u32 s45, s44, %d" % (m*16*2048 + s*1024))
            a("buffer_store_dwordx4 %s, v5, s[16:19], s45 offen" % vr(QT+16*m+4*s, 4))
    a("s_and_b32 s3, s6, 1")
    a("s_lshl_b32 s3, s3, 12")
    a("v_lshlrev_b32 v7, 4, v0")
    a("v_add_u32 v7, s3, v7")
    a("s_lshr_b32 s7, s6, 1")
    a("s_cmp_eq_u32 s7, 0")
    a("s_cbranch_scc1 %s_r0" % P)
    for q in range(4):
        a("ds_write_b128 v7, %s offset:%d" % (vr(KV+4*q, 4), 1024*q))
    a("s_waitcnt lgkmcnt(0)")
    a("s_barrier")
    a("s_branch %s_done" % P)
    a.label("%s_r0" % P)
    a("s_barrier")
    for q in range(4):
        a("ds_read_b128 %s, v7 offset:%d" % (vr(T+4*q, 4), 1024*q))
    a("s_waitcnt lgkmcnt(0)")
    for i in range(0, 16, 2):
        a("v_pk_add_f32 %s, %s, %s" % (vr(KV+i, 2), vr(KV+i, 2), vr(T+i, 2)))
    a("s_lshl_b32 s3, s4, 4")
    a("s_lshl_b32 s7, s5, 1")
    a("s_add_u32 s3, s3, s7")
    a("s_and_b32 s7, s6, 1")
    a("s_add_u32 s3, s3, s7")
    a("s_lshl_b32 s3, s3, 12")
    a("s_add_u32 s44, s3, 0x%x" % WS_KVP)
    a("v_lshlrev_b32 v5, 2, v0")
    for rho in range(16):
        a("buffer_store_dword v%d, v5, s[16:19], s44 offen offset:%d" % (KV+rho, 256*rho))
    a.label("%s_done" % P)
    a("s_waitcnt vmcnt(0)")

def kv_reduce(a, P):
    a.c("---- kv reduce ----")
    a("s_load_dwordx2 s[30:31], s[0:1], %d" % K_WS)
    a("s_waitcnt lgkmcnt(0)")
    srd(a, 16, 30, 31, WS_SIZE)
    a("s_lshl_b32 s3, s6, 10")
    a("v_lshlrev_b32 v1, 4, v0")
    a("v_add_u32 v1, s3, v1")
    a("s_lshl_b32 s7, s5, 12")
    for c in range(16):
        a("s_add_u32 s44, s7, 0x%x" % (WS_KVP + c*65536))
        a("buffer_load_dwordx4 %s, v1, s[16:19], s44 offen" % vr(16+4*c, 4))
    for c in range(1, 16):
        a("s_waitcnt vmcnt(%d)" % (15-c))
        a("v_pk_add_f32 v[16:17], v[16:17], %s" % vr(16+4*c, 2))
        a("v_pk_add_f32 v[18:19], v[18:19], %s" % vr(18+4*c, 2))
    a("s_add_u32 s44, s7, 0x%x" % WS_KV)
    a("buffer_store_dwordx4 v[16:19], v1, s[16:19], s44 offen")
    a("s_waitcnt vmcnt(0)")
```

```python
from common import *

def a2_loader(a, P):
    a.c("---- A2 loader ----")
    a("s_load_dwordx4 s[24:27], s[0:1], %d" % K_CRE)
    a("s_sub_u32 s7, s6, 4")
    a("v_lshrrev_b32 v1, 3, v0")
    a("v_and_b32 v2, 7, v0")
    a("v_lshrrev_b32 v3, 1, v1")
    a("v_xor_b32 v4, v2, v3")
    a("v_xor_b32 v5, 4, v4")
    a("v_lshlrev_b32 v4, 4, v4")
    a("v_lshlrev_b32 v5, 4, v5")
    a("s_lshl_b32 s3, s5, 6")
    a("s_lshl_b32 s40, s7, 4")
    a("s_add_u32 s3, s3, s40")
    a("v_add_u32 v6, s3, v1")
    a("v_mul_u32_u24 v6, 896, v6")
    a("v_add_u32 v10, v6, v4")
    a("v_add_u32 v11, %d, v6" % (8*896))
    a("v_add_u32 v11, v11, v5")
    a("s_lshl_b32 s40, s7, 11")
    a("s_waitcnt lgkmcnt(0)")
    srd(a, 8, 24, 25, W_BYTES)
    srd(a, 12, 26, 27, W_BYTES)
    for kb in range(7):
        for part in range(2):
            a("s_movk_i32 s41, %d" % (128*kb))
            for q in range(2):
                a("s_add_u32 m0, s40, %d" % ((part*7+kb)*8192 + q*1024))
                a("s_nop 0")
                a("buffer_load_dwordx4 v%d, s[%d:%d], s41 offen lds" % (10+q, 8+4*part, 11+4*part))
    a("s_waitcnt vmcnt(0)")
    a("s_barrier")

A2_NB = 24
UF = 64
A2ACC = 16
CF = 48
XS = 160
DF = 176
AC = 192

def a2_compute(a, P):
    a.c("---- A2 compute ----")
    a("s_load_dwordx2 s[30:31], s[0:1], %d" % K_WS)
    a("s_load_dwordx2 s[24:25], s[0:1], %d" % K_XA)
    a("s_load_dwordx2 s[26:27], s[0:1], %d" % K_DSK)
    a("s_load_dwordx2 s[28:29], s[0:1], %d" % K_OUT)
    a("v_and_b32 v1, 31, v0")
    a("v_lshrrev_b32 v2, 5, v0")
    a("v_lshlrev_b32 v5, 4, v0")
    a("s_lshl_b32 s3, s4, 2")
    a("s_add_u32 s3, s3, s6")
    a("s_mul_i32 s3, s3, %d" % (56*1024))
    a("s_add_u32 s44, s3, 0x%x" % WS_U)
    a("s_waitcnt lgkmcnt(0)")
    srd(a, 16, 30, 31, WS_SIZE)
    srd(a, 8, 24, 25, X_BYTES)
    srd(a, 20, 28, 29, OUT_BYTES)
    def uload(f):
        a("s_add_u32 s45, s44, %d" % (f*1024))
        a("buffer_load_dwordx4 %s, v5, s[16:19], s45 offen" % vr(UF+4*(f % A2_NB), 4))
    a("v_and_b32 v3, 1, v1")
    a("v_lshlrev_b32 v3, 4, v3")
    a("v_lshrrev_b32 v4, 1, v1")
    a("v_add_u32 v3, v3, v4")
    a("s_lshl_b32 s3, s4, 7")
    a("s_lshl_b32 s7, s6, 5")
    a("s_add_u32 s3, s3, s7")
    a("v_add_u32 v3, s3, v3")
    a("v_mul_u32_u24 v4, 896, v3")
    a("v_lshlrev_b32 v6, 4, v2")
    a("v_add_u32 v4, v4, v6")
    a("s_lshl_b32 s7, s5, 7")
    a("v_add_u32 v4, s7, v4")
    for s in range(4):
        a("buffer_load_dwordx4 %s, v4, s[8:11], 0 offen offset:%d" % (vr(XS+4*s, 4), 32*s))
    a("s_lshl_b32 s7, s5, 6")
    a("v_add_u32 v6, s7, v1")
    a("v_lshlrev_b32 v6, 1, v6")
    a("global_load_ushort v10, v6, s[26:27]")
    a("global_load_ushort v11, v6, s[26:27] offset:64")
    for f in range(A2_NB): uload(f)
    a("v_lshrrev_b32 v7, 1, v1")
    a("v_and_b32 v7, 7, v7")
    a("v_lshlrev_b32 v8, 7, v1")
    for sub in range(4):
        a("v_add_u32 v9, %d, v2" % (2*sub))
        a("v_xor_b32 v9, v9, v7")
        a("v_lshlrev_b32 v9, 4, v9")
        a("v_add_u32 v%d, v9, v8" % (AC+sub))
        a("v_add_u32 v%d, %d, v%d" % (AC+4+sub, 57344, AC+sub))
    a("s_waitcnt vmcnt(%d)" % A2_NB)
    a("v_lshlrev_b32 v9, 3, v2")
    a("v_sub_u32 v9, v1, v9")
    for nt in range(2):
        a("v_lshlrev_b32 v12, 16, v%d" % (10+nt))
        for sp in range(2):
            for q in range(4):
                d = DF + 4*(2*nt+sp) + q
                a("v_mov_b32 v%d, 0" % d)
                a("v_cmp_eq_u32 vcc, %d, v9" % (16*sp + 2*q))
                a("v_cndmask_b32 v%d, v%d, v%d, vcc" % (d, d, 10+nt))
                a("v_cmp_eq_u32 vcc, %d, v9" % (16*sp + 2*q + 1))
                a("v_cndmask_b32 v%d, v%d, v12, vcc" % (d, d))
    for nt in range(2):
        mfma(a, A2ACC+16*nt, XS+4*(2*nt), DF+4*(2*nt), None)
        mfma(a, A2ACC+16*nt, XS+4*(2*nt+1), DF+4*(2*nt+1), A2ACC+16*nt)
    a("s_barrier")
    def creads(f):
        g, part, sub = f >> 3, (f >> 2) & 1, f & 3
        blk = part*7 + g
        off = blk*8192
        reg = AC + sub
        if off >= 57344:
            off -= 57344; reg += 4
        for nt in range(2):
            a("ds_read_b128 %s, v%d offset:%d" % (vr(CF+8*(f & 1)+4*nt, 4), reg, off + nt*4096))
    creads(0)
    for f in range(56):
        if f+1 < 56: creads(f+1)
        issued = min(f + A2_NB, 56)
        a("s_waitcnt vmcnt(%d) lgkmcnt(%d)" % (issued - f - 1, 2 if f+1 < 56 else 0))
        for nt in range(2):
            mfma(a, A2ACC+16*nt, UF+4*(f % A2_NB), CF+8*(f & 1)+4*nt, A2ACC+16*nt)
        if f + A2_NB < 56: uload(f + A2_NB)
    a("s_lshl_b32 s3, s4, 7")
    a("s_lshl_b32 s7, s6, 5")
    a("s_add_u32 s3, s3, s7")
    a("s_mul_i32 s3, s3, 3584")
    a("s_lshl_b32 s7, s5, 8")
    a("s_add_u32 s44, s3, s7")
    a("v_mul_u32_u24 v3, %d, v2" % (2*3584))
    a("v_lshlrev_b32 v4, 2, v1")
    a("v_add_u32 v3, v3, v4")
    for rho in range(16):
        k, r = rho >> 2, rho & 3
        toff = 16*(r & 1) + 4*k + (r >> 1)
        a("s_add_u32 s45, s44, %d" % (toff*3584))
        for nt in range(2):
            a("buffer_store_dword v%d, v3, s[20:23], s45 offen offset:%d" % (A2ACC+16*nt+rho, 128*nt))
    a("s_waitcnt vmcnt(0)")

B2_KVB = 65536

def b2_loader(a, P):
    a.c("---- B2 loader ----")
    a("s_load_dwordx2 s[24:25], s[0:1], %d" % K_WO)
    a("s_load_dwordx2 s[30:31], s[0:1], %d" % K_WS)
    a("s_sub_u32 s7, s6, 4")
    a("v_lshrrev_b32 v1, 3, v0")
    a("v_and_b32 v2, 7, v0")
    a("v_lshrrev_b32 v3, 1, v1")
    a("v_and_b32 v3, 1, v3")
    a("v_lshlrev_b32 v3, 2, v3")
    a("v_xor_b32 v3, v3, v2")
    a("v_lshlrev_b32 v3, 4, v3")
    a("s_lshl_b32 s3, s7, 3")
    a("v_add_u32 v4, s3, v1")
    a("v_mul_u32_u24 v5, 896, v4")
    a("v_add_u32 v5, v5, v3")
    a("s_lshl_b32 s3, s5, 7")
    a("v_add_u32 v5, s3, v5")
    a("v_mov_b32 v6, 0x7fffff00")
    a("v_cmp_lt_u32 vcc, 27, v4")
    a("v_cndmask_b32 v10, v5, v6, vcc")
    a("s_lshl_b32 s40, s7, 10")
    a("s_waitcnt lgkmcnt(0)")
    srd(a, 8, 24, 25, W_BYTES)
    srd(a, 16, 30, 31, WS_SIZE)
    a("v_lshlrev_b32 v5, 4, v0")
    a("s_lshl_b32 s3, s7, 14")
    a("s_add_u32 s44, s3, 0x%x" % WS_KV)
    for hh in range(4):
        for q in range(4):
            a("s_add_u32 s45, s44, %d" % (hh*4096 + q*1024))
            a("buffer_load_dwordx4 %s, v5, s[16:19], s45 offen" % vr(16+16*hh+4*q, 4))
    for h in range(16):
        a("s_mov_b32 s41, %d" % (h*28*896))
        a("s_add_u32 m0, s40, %d" % (h*4096))
        a("s_nop 0")
        a("buffer_load_dwordx4 v10, s[8:11], s41 offen lds")
    a("v_lshrrev_b32 v6, 3, v0")
    a("v_and_b32 v6, 1, v6")
    a("v_lshlrev_b32 v6, 2, v6")
    a("v_lshrrev_b32 v7, 4, v0")
    a("v_add_u32 v6, v6, v7")
    a("v_lshlrev_b32 v6, 6, v6")
    a("v_and_b32 v7, 7, v0")
    a("v_lshlrev_b32 v7, 3, v7")
    a("v_add_u32 v6, v6, v7")
    a("s_lshl_b32 s3, s7, 13")
    a("s_add_u32 s3, s3, %d" % B2_KVB)
    a("v_add_u32 v6, s3, v6")
    a("s_waitcnt vmcnt(16)")
    for hh in range(4):
        for q in range(4):
            r = 16+16*hh+4*q
            a("v_cvt_pk_bf16_f32 v%d, v%d, v%d" % (r, r, r+1))
            a("v_cvt_pk_bf16_f32 v%d, v%d, v%d" % (r+1, r+2, r+3))
            a("ds_write_b64 v6, %s offset:%d" % (vr(r, 2), hh*2048 + q*512))
    a("s_waitcnt vmcnt(0) lgkmcnt(0)")
    a("s_barrier")

PQ = 64
B2ACC = 16
NUM = 192
OF = 224
KF = 48
WF = 240

def b2_compute(a, P):
    a.c("---- B2 compute ----")
    a("s_load_dwordx2 s[30:31], s[0:1], %d" % K_WS)
    a("s_load_dwordx2 s[28:29], s[0:1], %d" % K_OUT)
    a("v_lshlrev_b32 v5, 4, v0")
    a("s_lshl_b32 s3, s4, 2")
    a("s_add_u32 s3, s3, s6")
    a("s_lshl_b32 s3, s3, 15")
    a("s_add_u32 s44, s3, 0x%x" % WS_PQ)
    a("s_waitcnt lgkmcnt(0)")
    srd(a, 16, 30, 31, WS_SIZE)
    srd(a, 20, 28, 29, OUT_BYTES)
    for h in range(16):
        for s in range(2):
            a("s_add_u32 s45, s44, %d" % (h*2048 + s*1024))
            a("buffer_load_dwordx4 %s, v5, s[16:19], s45 offen" % vr(PQ+8*h+4*s, 4))
    a("v_lshrrev_b32 v4, 4, v0")
    a("v_and_b32 v6, 1, v4")
    a("v_lshrrev_b32 v4, 1, v4")
    a("v_and_b32 v7, 15, v0")
    a("v_lshrrev_b32 v7, 2, v7")
    a("v_and_b32 v8, 3, v0")
    a("v_lshlrev_b32 v4, 2, v4")
    a("v_add_u32 v4, v4, v7")
    a("v_lshlrev_b32 v6, 5, v6")
    a("v_lshlrev_b32 v8, 3, v8")
    a("v_add_u32 v6, v6, v8")
    a("v_lshlrev_b32 v9, 6, v4")
    a("v_add_u32 v9, v9, v6")
    a("v_add_u32 v9, %d, v9" % B2_KVB)
    a("v_lshrrev_b32 v7, 1, v7")
    a("v_lshlrev_b32 v7, 6, v7")
    a("v_lshlrev_b32 v10, 7, v4")
    a("v_xor_b32 v11, v6, v7")
    a("v_add_u32 v11, v11, v10")
    a("v_add_u32 v12, 64, v6")
    a("v_xor_b32 v12, v12, v7")
    a("v_add_u32 v12, v12, v10")
    a("s_mov_b32 s52, 0x358637bd")
    a("s_barrier")
    def X(h):
        for s in range(2):
            for rd in range(2):
                a("ds_read_b64_tr_b16 %s, v9 offset:%d" % (vr(KF+4*s+2*rd, 2), h*2048 + (16*s+8*rd)*64))
        a("s_waitcnt vmcnt(%d) lgkmcnt(0)" % (2*(15-h)))
        n = NUM + 16*(h & 1)
        mfma(a, n, KF, PQ+8*h, None)
        mfma(a, n, KF+4, PQ+8*h+4, n)
    def Y(h):
        n = NUM + 16*(h & 1)
        o = OF + 8*(h & 1)
        a("v_mov_b32 v13, v%d" % (n+12))
        a("v_mov_b32 v14, v%d" % (n+12))
        a("v_permlane32_swap_b32 v13, v14")
        a("v_add_f32 v14, s52, v14")
        a("v_rcp_f32 v14, v14")
        for i in range(0, 16, 2):
            a("v_pk_mul_f32 %s, %s, v[14:15] op_sel_hi:[1,0]" % (vr(n+i, 2), vr(n+i, 2)))
            a("v_cvt_pk_bf16_f32 v%d, v%d, v%d" % (o+i//2, n+i, n+i+1))
    def Z(h):
        o = OF + 8*(h & 1)
        for s in range(2):
            for nt in range(2):
                for rd in range(2):
                    a("ds_read_b64_tr_b16 %s, v%d offset:%d" % (vr(WF+4*(2*s+nt)+2*rd, 2), 11+nt, h*4096 + (16*s+8*rd)*128))
        a("s_waitcnt lgkmcnt(0)")
        for s in range(2):
            for nt in range(2):
                mfma(a, B2ACC+16*nt, o+4*s, WF+4*(2*s+nt), None if (h == 0 and s == 0) else B2ACC+16*nt)
    X(0)
    for h in range(16):
        if h+1 < 16: X(h+1)
        Y(h)
        Z(h)
    a("s_lshl_b32 s3, s4, 7")
    a("s_lshl_b32 s7, s6, 5")
    a("s_add_u32 s3, s3, s7")
    a("s_mul_i32 s3, s3, 3584")
    a("s_lshl_b32 s7, s5, 8")
    a("s_add_u32 s3, s3, s7")
    a("s_add_u32 s44, s3, 1792")
    a("v_lshrrev_b32 v2, 5, v0")
    a("v_and_b32 v1, 31, v0")
    a("v_mul_u32_u24 v3, %d, v2" % (4*3584))
    a("v_lshlrev_b32 v4, 2, v1")
    a("v_add_u32 v3, v3, v4")
    for rho in range(16):
        k, r = rho >> 2, rho & 3
        a("s_add_u32 s45, s44, %d" % ((8*k + r)*3584))
        for nt in range(2):
            a("buffer_store_dword v%d, v3, s[20:23], s45 offen offset:%d" % (B2ACC+16*nt+rho, 128*nt))
    a("s_waitcnt vmcnt(0)")
```

```python
import sys
from common import *
from role_a1 import *
from role_b1 import *
from role_p2 import *

def head(a, name):
    a(".text")
    a(".globl %s" % name)
    a(".p2align 8")
    a(".type %s,@function" % name)
    a.label(name)

def decode(a, P):
    a("s_cmp_ge_u32 s2, 256")
    a("s_cbranch_scc1 %s_end" % P)
    a("v_lshrrev_b32 v1, 6, v0")
    a("v_and_b32 v0, 63, v0")
    a("v_readfirstlane_b32 s6, v1")
    a("s_and_b32 s3, s2, 7")
    a("s_lshr_b32 s7, s2, 3")
    a("s_mul_i32 s46, s7, 37")
    a("s_lshr_b32 s46, s46, 8")
    a("s_mul_i32 s47, s46, 7")
    a("s_sub_u32 s47, s7, s47")

def k1(a):
    P = "k1"
    head(a, "k1_kernel")
    decode(a, P)
    a("s_cmp_ge_u32 s3, 4")
    a("s_cbranch_scc1 k1_b")
    a("s_cmp_ge_u32 s7, 28")
    a("s_cbranch_scc1 k1_end")
    a("s_lshl_b32 s4, s3, 2")
    a("s_add_u32 s4, s4, s46")
    a("s_mov_b32 s5, s47")
    a("s_cmp_ge_u32 s6, 4")
    a("s_cbranch_scc1 k1_al")
    a1_compute(a, "k1a", "E")
    a("s_endpgm")
    a.label("k1_al")
    a1_loader(a, "k1al")
    a("s_endpgm")
    a.label("k1_b")
    a("s_sub_u32 s3, s3, 4")
    a("s_lshl_b32 s4, s3, 2")
    a("s_lshr_b32 s46, s7, 3")
    a("s_add_u32 s4, s4, s46")
    a("s_and_b32 s5, s7, 7")
    a("s_cmp_ge_u32 s6, 4")
    a("s_cbranch_scc1 k1_bl")
    b1_compute(a, "k1b")
    a("s_endpgm")
    a.label("k1_bl")
    b1_loader(a, "k1bl")
    a.label("k1_end")
    a("s_endpgm")

def k2(a):
    P = "k2"
    head(a, "k2_kernel")
    decode(a, P)
    a("s_cmp_ge_u32 s3, 4")
    a("s_cbranch_scc1 k2_b")
    a("s_cmp_ge_u32 s7, 28")
    a("s_cbranch_scc1 k2_end")
    a("s_lshl_b32 s4, s3, 2")
    a("s_add_u32 s4, s4, s46")
    a("s_mov_b32 s5, s47")
    a("s_cmp_ge_u32 s6, 4")
    a("s_cbranch_scc1 k2_al")
    a1_compute(a, "k2a", "U")
    a("s_endpgm")
    a.label("k2_al")
    a1_loader(a, "k2al")
    a("s_endpgm")
    a.label("k2_b")
    a("s_cmp_ge_u32 s7, 4")
    a("s_cbranch_scc1 k2_end")
    a("s_cmp_ge_u32 s6, 4")
    a("s_cbranch_scc1 k2_end")
    a("s_sub_u32 s3, s3, 4")
    a("s_lshl_b32 s5, s3, 2")
    a("s_add_u32 s5, s5, s7")
    kv_reduce(a, "k2r")
    a.label("k2_end")
    a("s_endpgm")

def k3(a):
    P = "k3"
    head(a, "k3_kernel")
    decode(a, P)
    a("s_cmp_ge_u32 s7, 28")
    a("s_cbranch_scc1 k3_end")
    a("s_and_b32 s4, s3, 3")
    a("s_lshl_b32 s4, s4, 2")
    a("s_add_u32 s4, s4, s46")
    a("s_mov_b32 s5, s47")
    a("s_cmp_ge_u32 s3, 4")
    a("s_cbranch_scc1 k3_b")
    a("s_cmp_ge_u32 s6, 4")
    a("s_cbranch_scc1 k3_al")
    a2_compute(a, "k3a")
    a("s_endpgm")
    a.label("k3_al")
    a2_loader(a, "k3al")
    a("s_endpgm")
    a.label("k3_b")
    a("s_cmp_ge_u32 s6, 4")
    a("s_cbranch_scc1 k3_bl")
    b2_compute(a, "k3b")
    a("s_endpgm")
    a.label("k3_bl")
    b2_loader(a, "k3bl")
    a.label("k3_end")
    a("s_endpgm")

def build(extra_empty=0):
    hdr = open("cdna_kernels/%s.s.ref" % KNAME).read().split("\n")
    hdr = [l for l in hdr if l.startswith(";") and "@launch" not in l and "Override" not in l and "grid=ceil" not in l]
    hdr = [l for l in hdr if l.startswith(";   offset") or l.startswith("; Kernarg")]
    launches = ["; @launch kernel=k1_kernel grid=(256,1,1) block=(512,1,1) lds=163840",
                "; @launch kernel=k2_kernel grid=(256,1,1) block=(512,1,1) lds=131072",
                "; @launch kernel=k3_kernel grid=(256,1,1) block=(512,1,1) lds=114688"]
    names = ["k1_kernel", "k2_kernel", "k3_kernel"]
    a = Asm()
    k1(a); k2(a); k3(a)
    if extra_empty:
        head(a, "k0_kernel")
        a("s_endpgm")
        launches += ["; @launch kernel=k0_kernel grid=(256,1,1) block=(512,1,1) lds=0"]*extra_empty
        names.append("k0_kernel")
    body = fix_hazards(a.lines, verbose=True)
    txt = "\n".join(hdr + launches) + "\n"
    txt += '.amdgcn_target "amdgcn-amd-amdhsa--gfx950"\n'
    txt += "\n".join(body) + "\n"
    txt += '.section .rodata,"a"\n'
    for n in names:
        txt += ".p2align 6\n" + descriptor(n)
    return txt

if __name__ == "__main__":
    extra = int(sys.argv[2]) if len(sys.argv) > 2 else 0
    out = sys.argv[1] if len(sys.argv) > 1 else "cdna_kernels/%s.s" % KNAME
    open(out, "w").write(build(extra))
    print("wrote", out)
```

```python
from asmlib import Asm, fix_hazards

KNAME = "concat_heads__ssm_conv_s5__linear_attn_block__prompt"
P_XA, P_LRE, P_LIM, P_BRE, P_BIM, P_CRE, P_CIM, P_LDT, P_DSK, P_XB, P_WQKV, P_WO, P_OUT, P_DBG, P_WS = [64+2*i for i in range(15)]
WS_E   = 0x000000
WS_FB  = 0x01C000
WS_KV  = 0x020000
WS_FU  = 0x030000
WS_ZEND = 0x040000
WS_PQ  = 0x200000
WS_U   = 0x400000
WS_SIZE = 0x800000
E_BYTES = 16*448*16
X_BYTES = 2048*448*2
W_BYTES = 448*448*2
WQKV_BYTES = 448*1344*2
OUT_BYTES = 2048*896*4
LOG2E = 0x3fb8aa3b
INV2PI = 0x3e22f983
SPIN_MAX = 0x40000

def srd(a, dst, p, size, off=0):
    if off:
        a("s_add_u32 s%d, s%d, 0x%x" % (dst, p, off))
        a("s_addc_u32 s%d, s%d, 0" % (dst+1, p+1))
    else:
        a("s_mov_b32 s%d, s%d" % (dst, p))
        a("s_mov_b32 s%d, s%d" % (dst+1, p+1))
    a("s_mov_b32 s%d, 0x%x" % (dst+2, size))
    a("s_mov_b32 s%d, 0x20000" % (dst+3))

def vr(a, n=1):
    return "v%d" % a if n == 1 else "v[%d:%d]" % (a, a+n-1)

def mfma(a, d, x, y, c):
    cs = "0" if c is None else vr(c, 16)
    a("v_mfma_f32_32x32x16_bf16 %s, %s, %s, %s" % (vr(d, 16), vr(x, 4), vr(y, 4), cs))

def cmul(a, d, x, y):
    a("v_mul_f32 v%d, v%d, v%d" % (d, x, y))
    a("v_mul_f32 v%d, v%d, v%d" % (d+1, x, y+1))
    a("v_fma_f32 v%d, -v%d, v%d, v%d" % (d, x+1, y+1, d))
    a("v_fma_f32 v%d, v%d, v%d, v%d" % (d+1, x+1, y, d+1))

def cfma(a, d, x, y, z):
    a("v_fma_f32 v%d, v%d, v%d, v%d" % (d, x, y, z))
    a("v_fma_f32 v%d, v%d, v%d, v%d" % (d+1, x, y+1, z+1))
    a("v_fma_f32 v%d, -v%d, v%d, v%d" % (d, x+1, y+1, d))
    a("v_fma_f32 v%d, v%d, v%d, v%d" % (d+1, x+1, y, d+1))

def csq(a, d, x):
    a("v_mul_f32 v%d, v%d, v%d" % (d, x, x))
    a("v_mul_f32 v%d, v%d, v%d" % (d+1, x, x+1))
    a("v_fma_f32 v%d, -v%d, v%d, v%d" % (d, x+1, x+1, d))
    a("v_add_f32 v%d, v%d, v%d" % (d+1, d+1, d+1))

class Opt:
    rot = False
    pf = True
    codepf = True
    b_first = False
    la0 = 1
    la = 2
VDUMMY = 254
OOB = 0x7fffff00

class Filler:
    def __init__(self):
        self.q = []
        self.late = []
    def __call__(self, s):
        for ln in s.split("\n"):
            ln = ln.strip()
            if ln: self.q.append(ln)
    def c(self, s): pass
    def emit(self, a, n):
        k = 0
        while self.q and k < n:
            a(self.q.pop(0)); k += 1
    def flush(self, a):
        self.emit(a, 1 << 30)

def descriptor(name, vgpr=256, sgpr=102):
    return """.amdhsa_kernel %s
  .amdhsa_next_free_vgpr %d
  .amdhsa_next_free_sgpr %d
  .amdhsa_accum_offset %d
  .amdhsa_group_segment_fixed_size 0
  .amdhsa_kernarg_size 120
  .amdhsa_user_sgpr_count 2
  .amdhsa_user_sgpr_kernarg_segment_ptr 1
  .amdhsa_system_sgpr_workgroup_id_x 1
  .amdhsa_float_denorm_mode_32 3
.end_amdhsa_kernel
""" % (name, vgpr, sgpr, (vgpr+3)//4*4)

WS_STAMP = 0x1000000
VSTAMP = 255
class Stamps:
    enabled = False
    names = {}
    role = None
    n = 0
def stamp_role(role):
    Stamps.role = role; Stamps.n = 2; Stamps.names[role] = ["entry", "karg"]
def stamp(a, name=""):
    if not Stamps.enabled: return
    i = Stamps.n; Stamps.n += 1
    Stamps.names[Stamps.role].append(name)
    assert i < 62
    a("s_memtime s[94:95]")
    a("s_waitcnt lgkmcnt(0)")
    a("v_writelane_b32 v%d, s94, %d" % (VSTAMP, i))
def stamp_rt(a):
    if not Stamps.enabled: return
    a("s_waitcnt lgkmcnt(0)")
    a("v_writelane_b32 v%d, s94, 63" % VSTAMP)
    a("v_writelane_b32 v%d, s98, 0" % VSTAMP)
    a("s_memtime s[94:95]")
    a("s_waitcnt lgkmcnt(0)")
    a("v_writelane_b32 v%d, s94, 1" % VSTAMP)
def stamp_flush(a):
    if not Stamps.enabled: return
    a("s_memrealtime s[94:95]")
    a("s_waitcnt lgkmcnt(0) vmcnt(0)")
    a("v_writelane_b32 v%d, s94, 62" % VSTAMP)
    a("s_add_u32 s96, s%d, 0x%x" % (P_WS, WS_STAMP))
    a("s_addc_u32 s97, s%d, 0" % (P_WS+1))
    a("s_lshl_b32 s94, s2, 3")
    a("s_add_u32 s94, s94, s6")
    a("s_lshl_b32 s94, s94, 8")
    a("s_mov_b64 exec, -1")
    a("v_lshlrev_b32 v1, 2, v0")
    a("v_add_u32 v1, s94, v1")
    a("global_store_dword v1, v%d, s[96:97]" % VSTAMP)
    a("s_waitcnt vmcnt(0)")

def spin_guard(a, sreg, label):
    a("s_add_u32 s%d, s%d, 1" % (sreg, sreg))
    a("s_cmp_lt_u32 s%d, 0x%x" % (sreg, SPIN_MAX))
    a("s_cbranch_scc1 %s" % label)

def poll_zero_done(a, P):
    a("v_lshlrev_b32 v20, 2, v0")
    a("v_cmp_gt_u32 vcc, 16, v0")
    a("s_and_saveexec_b64 s[42:43], vcc")
    a("s_mov_b32 s46, 0")
    a.label("%s_zd" % P)
    a("global_load_dword v21, v20, s[%d:%d] sc1" % (P_DBG, P_DBG+1))
    a("s_waitcnt vmcnt(0)")
    a("v_cmp_ne_u32 vcc, 0, v21")
    a("s_cmp_eq_u64 vcc, exec")
    a("s_cbranch_scc1 %s_zd_ok" % P)
    spin_guard(a, 46, "%s_zd" % P)
    a.label("%s_zd_ok" % P)
    a("s_mov_b64 exec, s[42:43]")
```

```python
from common import *

NSLOT = 4
L_E   = 155648
L_TR  = 114688
A_LA0 = 2

def krot(a, c_reg, g_reg):
    if not Opt.rot:
        a("s_mov_b32 s47, 0")
        return
    a("s_and_b32 s47, s%d, 3" % c_reg)
    a("s_lshl_b32 s47, s47, 1")
    a("s_add_u32 s47, s47, s%d" % g_reg)
    a("s_cmp_ge_u32 s47, 7")
    a("s_cselect_b32 s48, 7, 0")
    a("s_sub_u32 s47, s47, s48")
    a("s_cmp_ge_u32 s47, 7")
    a("s_cselect_b32 s48, 7, 0")
    a("s_sub_u32 s47, s47, s48")

def knext(a):
    a("s_add_u32 s47, s47, 1")
    a("s_cmp_eq_u32 s47, 7")
    a("s_cselect_b32 s47, 0, s47")

def a_loader(a, P):
    stamp_role("A ld")
    a.c("---- A loader ----")
    a("s_sub_u32 s7, s6, 4")
    a("v_lshrrev_b32 v1, 3, v0")
    a("v_and_b32 v2, 7, v0")
    a("v_lshrrev_b32 v3, 1, v1")
    a("v_xor_b32 v4, v2, v3")
    a("v_xor_b32 v5, 4, v4")
    a("v_lshlrev_b32 v4, 4, v4")
    a("v_lshlrev_b32 v5, 4, v5")
    a("v_lshrrev_b32 v6, 2, v1")
    a("v_lshlrev_b32 v6, 5, v6")
    a("v_and_b32 v7, 1, v1")
    a("v_lshlrev_b32 v7, 4, v7")
    a("v_add_u32 v6, v6, v7")
    a("v_and_b32 v7, 1, v3")
    a("v_add_u32 v6, v6, v7")
    a("s_lshr_b32 s26, s7, 1")
    a("s_and_b32 s27, s7, 1")
    a("s_lshl_b32 s3, s26, 6")
    a("s_lshl_b32 s40, s27, 3")
    a("s_add_u32 s3, s3, s40")
    a("s_lshl_b32 s40, s4, 7")
    a("s_add_u32 s3, s3, s40")
    a("v_add_u32 v6, s3, v6")
    a("v_mul_u32_u24 v6, 896, v6")
    for q in range(4):
        a("v_add_u32 v%d, %d, v6" % (10+q, 2*q*896))
        a("v_add_u32 v%d, v%d, v%d" % (10+q, 10+q, 4+(q & 1)))
    a("s_lshl_b32 s3, s5, 6")
    a("s_lshl_b32 s40, s27, 5")
    a("s_add_u32 s3, s3, s40")
    a("v_add_u32 v6, s3, v1")
    a("v_mul_u32_u24 v6, 896, v6")
    for q in range(4):
        a("v_add_u32 v%d, %d, v6" % (14+q, 8*q*896))
        a("v_add_u32 v%d, v%d, v%d" % (14+q, 14+q, 4+(q & 1)))
    a("s_lshl_b32 s3, s5, 6")
    a("s_lshl_b32 s40, s7, 4")
    a("s_add_u32 s3, s3, s40")
    a("v_add_u32 v6, s3, v1")
    a("v_mul_u32_u24 v6, 896, v6")
    a("v_add_u32 v18, v6, v4")
    a("v_add_u32 v19, %d, v6" % (8*896))
    a("v_add_u32 v19, v19, v5")
    a("s_lshl_b32 s40, s7, 12")
    krot(a, 4, 5)
    a("s_waitcnt lgkmcnt(0)")
    srd(a, 8, P_XA, X_BYTES)
    a("s_cmp_eq_u32 s26, 0")
    a("s_cselect_b32 s12, s%d, s%d" % (P_BRE, P_BIM))
    a("s_cselect_b32 s13, s%d, s%d" % (P_BRE+1, P_BIM+1))
    a("s_mov_b32 s14, 0x%x" % W_BYTES)
    a("s_mov_b32 s15, 0x20000")
    stamp(a, "setup")
    def issue(i):
        slot = i % NSLOT
        a("s_lshl_b32 s41, s47, 7")
        knext(a)
        for q in range(4):
            a("s_add_u32 m0, s40, %d" % (slot*32768 + q*1024))
            a("s_nop 0")
            a("buffer_load_dwordx4 v%d, s[8:11], s41 offen lds" % (10+q))
        for q in range(4):
            a("s_add_u32 m0, s40, %d" % (slot*32768 + 16384 + q*1024))
            a("s_nop 0")
            a("buffer_load_dwordx4 v%d, s[12:15], s41 offen lds" % (14+q))
    issued = 0
    issue(0); issued += 1
    if Opt.pf: a("s_barrier")
    for i in range(1, Opt.la0):
        issue(i); issued += 1
    for s in range(7):
        a("s_waitcnt vmcnt(%d)" % (8*(issued - 1 - s)))
        stamp(a, "land%d" % s)
        a("s_barrier")
        while issued < 7 and issued <= s + Opt.la:
            issue(issued); issued += 1
    poll_zero_done(a, P)
    stamp(a, "zd")
    a("s_barrier")
    a("s_barrier")
    srd(a, 8, P_CRE, W_BYTES)
    srd(a, 12, P_CIM, W_BYTES)
    a("s_lshl_b32 s40, s7, 11")
    for kb in range(7):
        for part in range(2):
            a("s_movk_i32 s41, %d" % (128*kb))
            for q in range(2):
                a("s_add_u32 m0, s40, %d" % ((part*7+kb)*8192 + q*1024))
                a("s_nop 0")
                a("buffer_load_dwordx4 v%d, s[%d:%d], s41 offen lds" % (18+q, 8+4*part, 11+4*part))
    stamp(a, "Cissued")
    a("s_waitcnt vmcnt(0)")
    stamp(a, "Clanded")
    a("s_barrier")

AX0, AW0, AX1, AW1 = 16, 20, 24, 28
FX = 32
ACC = 64
VL, VG, VL16, VL128, VW0, VW1, VL256 = 128, 130, 132, 134, 136, 138, 140
PT = 142
VT = 160
def accreg(part, m): return ACC + 32*part + 16*m

def a_param_loads(a):
    a("s_lshl_b32 s3, s5, 6")
    a("s_and_b32 s7, s6, 1")
    a("s_lshl_b32 s7, s7, 5")
    a("s_add_u32 s3, s3, s7")
    a("v_and_b32 v1, 31, v0")
    a("v_add_u32 v1, s3, v1")
    a("v_lshlrev_b32 v2, 1, v1")
    a("s_waitcnt lgkmcnt(0)")
    a("global_load_ushort v%d, v2, s[%d:%d]" % (PT+1, P_LRE, P_LRE+1))
    a("global_load_ushort v%d, v2, s[%d:%d]" % (PT+2, P_LIM, P_LIM+1))
    a("global_load_ushort v%d, v2, s[%d:%d]" % (PT+3, P_LDT, P_LDT+1))

def a_params(f):
    t = lambda i: PT + i
    lre, lim, dt = t(1), t(2), t(3)
    if Opt.pf:
        f.q.append("s_cmp_eq_u32 s6, 0\ns_cbranch_scc1 LA_pw\ns_waitcnt vmcnt(0)\nLA_pw:\ns_waitcnt vmcnt(12)")
    else:
        f("s_waitcnt vmcnt(0)")
    f("v_lshlrev_b32 v%d, 16, v%d" % (lre, lre))
    f("v_lshlrev_b32 v%d, 16, v%d" % (lim, lim))
    f("v_lshlrev_b32 v%d, 16, v%d" % (dt, dt))
    f("v_mul_f32 v%d, 0x%x, v%d" % (dt, LOG2E, dt))
    f("v_exp_f32 v%d, v%d" % (dt, dt))
    f("s_nop 0")
    f("v_cvt_pk_bf16_f32 v%d, v%d, v%d" % (dt, dt, dt))
    f("v_lshlrev_b32 v%d, 16, v%d" % (dt, dt))
    f("v_mul_f32 v%d, v%d, v%d" % (t(4), dt, lre))
    f("v_mul_f32 v%d, v%d, v%d" % (t(5), dt, lim))
    f("v_mul_f32 v%d, 0x%x, v%d" % (t(4), LOG2E, t(4)))
    f("v_exp_f32 v%d, v%d" % (t(4), t(4)))
    f("v_mul_f32 v%d, 0x%x, v%d" % (t(5), INV2PI, t(5)))
    f("v_fract_f32 v%d, v%d" % (t(5), t(5)))
    f("v_cos_f32 v%d, v%d" % (t(6), t(5)))
    f("v_sin_f32 v%d, v%d" % (t(7), t(5)))
    f("s_nop 0")
    f("v_mul_f32 v%d, v%d, v%d" % (VL, t(4), t(6)))
    f("v_mul_f32 v%d, v%d, v%d" % (VL+1, t(4), t(7)))
    f("v_add_f32 v%d, -1.0, v%d" % (t(4), VL))
    f("v_mul_f32 v%d, v%d, v%d" % (t(5), lre, lre))
    f("v_fma_f32 v%d, v%d, v%d, v%d" % (t(5), lim, lim, t(5)))
    f("v_rcp_f32 v%d, v%d" % (t(5), t(5)))
    f("v_mul_f32 v%d, v%d, v%d" % (t(6), t(4), lre))
    f("v_fma_f32 v%d, v%d, v%d, v%d" % (t(6), VL+1, lim, t(6)))
    f("v_mul_f32 v%d, v%d, v%d" % (t(7), VL+1, lre))
    f("v_fma_f32 v%d, -v%d, v%d, v%d" % (t(7), t(4), lim, t(7)))
    f("v_add_f32 v%d, v%d, v%d" % (t(5), t(5), t(5)))
    f("v_mul_f32 v%d, v%d, v%d" % (VG, t(6), t(5)))
    f("v_mul_f32 v%d, v%d, v%d" % (VG+1, t(7), t(5)))
    csq(f, t(0), VL)
    csq(f, t(2), t(0))
    csq(f, t(0), t(2))
    csq(f, VL16, t(0))
    csq(f, t(0), VL16)
    csq(f, t(2), t(0))
    csq(f, VL128, t(2))
    csq(f, VL256, VL128)
    f("v_cndmask_b32 v%d, v%d, 1.0, s[50:51]" % (t(4), t(0)))
    f("v_cndmask_b32 v%d, v%d, 0, s[50:51]" % (t(5), t(1)))
    f("v_cndmask_b32 v%d, v%d, 1.0, s[52:53]" % (t(6), t(2)))
    f("v_cndmask_b32 v%d, v%d, 0, s[52:53]" % (t(7), t(3)))
    cmul(f, VW0, t(4), t(6))
    cmul(f, VW1, VW0, VL16)

def a_prefetch(a, fill):
    srd(a, 8, P_XA, X_BYTES)
    a("s_and_b32 s24, s4, 3")
    a("s_cmp_lt_u32 s24, 2")
    a("s_cselect_b32 s12, s%d, s%d" % (P_BRE, P_BIM))
    a("s_cselect_b32 s13, s%d, s%d" % (P_BRE+1, P_BIM+1))
    a("s_mov_b32 s14, 0x%x" % W_BYTES)
    a("s_mov_b32 s15, 0x20000")
    a("s_mul_i32 s3, s5, 19")
    a("v_add_u32 v5, s3, v0")
    a("v_cmp_gt_u32 vcc, 19, v0")
    a("s_movk_i32 s25, 128")
    a("v_cmp_gt_u32 s[42:43], s25, v5")
    a("s_and_b64 vcc, vcc, s[42:43]")
    a("s_lshl_b32 s3, s4, 7")
    a("v_add_u32 v5, s3, v5")
    a("v_mul_u32_u24 v5, 896, v5")
    a("v_mov_b32 v6, 0x%x" % OOB)
    a("v_cndmask_b32 v5, v6, v5, vcc")
    a("s_and_b32 s25, s24, 1")
    a("s_lshl_b32 s25, s25, 5")
    a("s_lshl_b32 s3, s5, 6")
    a("s_add_u32 s3, s3, s25")
    a("v_add_u32 v7, s3, v0")
    a("v_mul_u32_u24 v7, 896, v7")
    a("v_cndmask_b32 v7, v6, v7, s[50:51]")
    a("s_barrier")
    a("s_cmp_eq_u32 s6, 0")
    a("s_cbranch_scc0 LA_nopf")
    for st in range(1, 7):
        a("s_movk_i32 s41, %d" % (128*st))
        a("buffer_load_dword v%d, v5, s[8:11], s41 offen" % VDUMMY)
        a("buffer_load_dword v%d, v7, s[12:15], s41 offen" % VDUMMY)
    a.label("LA_nopf")
    a("s_mul_i32 s25, s24, 7")
    a("s_add_u32 s25, s25, s5")
    a("s_lshl_b32 s25, s25, 4")
    a("s_and_b32 s3, s6, 1")
    a("s_lshl_b32 s3, s3, 3")
    a("s_add_u32 s25, s25, s3")
    a("v_mul_u32_u24 v8, 37, v0")
    a("v_lshrrev_b32 v8, 8, v8")
    a("v_mul_u32_u24 v9, 7, v8")
    a("v_sub_u32 v9, v0, v9")
    a("v_add_u32 v8, s25, v8")
    a("v_mul_u32_u24 v8, 896, v8")
    a("v_lshlrev_b32 v9, 7, v9")
    a("v_add_u32 v8, v8, v9")
    a("v_cmp_gt_u32 vcc, 56, v0")
    a("v_cndmask_b32 v15, v6, v8, vcc")
    a("s_cmp_lt_u32 s6, 2")
    a("s_cselect_b32 s24, s%d, s%d" % (P_CRE, P_CIM))
    a("s_cselect_b32 s25, s%d, s%d" % (P_CRE+1, P_CIM+1))
    a("s_mov_b32 s26, 0x%x" % W_BYTES)
    a("s_mov_b32 s27, 0x20000")
    fill.late.append("buffer_load_dword v%d, v15, s[24:27], 0 offen" % VDUMMY)

def a_compute(a, P):
    stamp_role("A cmp")
    a.c("---- A compute ----")
    a_param_loads(a)
    a("s_mov_b32 s50, -1")
    a("s_mov_b32 s51, 0")
    a("s_lshr_b32 s7, s6, 1")
    a("s_cmp_eq_u32 s7, 0")
    a("s_cselect_b64 s[52:53], -1, 0")
    a("v_and_b32 v1, 31, v0")
    a("v_lshrrev_b32 v2, 5, v0")
    a("v_lshrrev_b32 v3, 1, v1")
    a("v_and_b32 v3, 7, v3")
    a("s_and_b32 s3, s6, 1")
    a("s_lshl_b32 s7, s7, 13")
    a("s_lshl_b32 s3, s3, 12")
    a("s_add_u32 s3, s3, 16384")
    a("v_lshlrev_b32 v4, 7, v1")
    for ks in range(4):
        a("v_add_u32 v5, %d, v2" % (2*ks))
        a("v_xor_b32 v5, v5, v3")
        a("v_lshlrev_b32 v5, 4, v5")
        a("v_add_u32 v5, v5, v4")
        a("v_add_u32 v%d, s7, v5" % (AX0+ks))
        a("v_add_u32 v%d, s3, v5" % (AW0+ks))
        a("v_add_u32 v%d, 0x10000, v%d" % (AX1+ks, AX0+ks))
        a("v_add_u32 v%d, 0x10000, v%d" % (AW1+ks, AW0+ks))
    fill = Filler()
    a_params(fill)
    if Opt.pf:
        a_prefetch(a, fill)
    def reads(s, ks):
        slot = s % NSLOT
        b = (4*s + ks) & 1
        ax = (AX0 if slot < 2 else AX1) + ks
        aw = (AW0 if slot < 2 else AW1) + ks
        o = (slot & 1)*32768
        for m in range(2):
            a("ds_read_b128 %s, v%d offset:%d" % (vr(FX+16*b+4*m, 4), ax, o + m*4096))
        for part in range(2):
            a("ds_read_b128 %s, v%d offset:%d" % (vr(FX+16*b+8+4*part, 4), aw, o + part*8192))
    def mm(s, ks):
        b = (4*s + ks) & 1
        first = (s == 0 and ks == 0)
        for part in range(2):
            for m in range(2):
                d = accreg(part, m)
                mfma(a, d, FX+16*b+4*m, FX+16*b+8+4*part, None if first else d)
                if s >= 1: fill.emit(a, 3)
    stamp(a, "setup")
    a("s_barrier")
    stamp(a, "B0")
    reads(0, 0)
    for s in range(7):
        for ks in range(3):
            reads(s, ks+1)
            a("s_waitcnt lgkmcnt(4)")
            mm(s, ks)
        a("s_waitcnt lgkmcnt(0)")
        if s < 6:
            a("s_barrier")
            reads(s+1, 0)
        if s == 3:
            for ln in fill.late: a(ln)
        mm(s, 3)
    fill.flush(a)
    stamp(a, "gemm1")
    E0, E1 = VT, VT+4
    def pair(part, pos):
        m, aa = pos >> 3, pos & 7
        return accreg(part, m) + 2*aa
    cur = None
    for pos in range(1, 16):
        pr = pair(0, 0) if pos == 1 else cur
        pi = pair(1, 0) if pos == 1 else cur+2
        nxt = E0 if (pos & 1) else E1
        a("v_pk_fma_f32 %s, %s, %s, %s op_sel:[0,0,0] op_sel_hi:[0,1,1]" % (vr(nxt,2), vr(VL,2), vr(pr,2), vr(pair(0,pos),2)))
        a("v_pk_fma_f32 %s, %s, %s, %s op_sel:[0,0,0] op_sel_hi:[0,1,1]" % (vr(nxt+2,2), vr(VL,2), vr(pi,2), vr(pair(1,pos),2)))
        a("v_pk_fma_f32 %s, %s, %s, %s op_sel:[1,0,0] op_sel_hi:[1,1,1] neg_lo:[1,0,0] neg_hi:[1,0,0]" % (vr(nxt,2), vr(VL,2), vr(pi,2), vr(nxt,2)))
        a("v_pk_fma_f32 %s, %s, %s, %s op_sel:[1,0,0] op_sel_hi:[1,1,1]" % (vr(nxt+2,2), vr(VL,2), vr(pr,2), vr(nxt+2,2)))
        cur = nxt
    a("v_mov_b32 v%d, v%d" % (VT+8, cur))
    a("v_mov_b32 v%d, v%d" % (VT+9, cur+2))
    a("v_mov_b32 v%d, v%d" % (VT+10, cur+1))
    a("v_mov_b32 v%d, v%d" % (VT+11, cur+3))
    a("v_and_b32 v1, 31, v0")
    a("v_lshrrev_b32 v2, 5, v0")
    a("s_and_b32 s3, s6, 1")
    a("s_lshl_b32 s3, s3, 8")
    a("s_add_u32 s3, s3, %d" % L_E)
    a("v_lshlrev_b32 v3, 3, v1")
    a("v_add_u32 v3, s3, v3")
    a("s_lshr_b32 s7, s6, 1")
    a("s_lshl_b32 s7, s7, 11")
    a("v_lshlrev_b32 v4, 10, v2")
    a("v_add_u32 v4, v4, v3")
    a("v_add_u32 v4, s7, v4")
    a("ds_write_b64 v4, %s" % vr(VT+8, 2))
    a("ds_write_b64 v4, %s offset:512" % vr(VT+10, 2))
    a("s_lshl_b32 s3, s5, 6")
    a("s_and_b32 s7, s6, 1")
    a("s_lshl_b32 s7, s7, 5")
    a("s_add_u32 s3, s3, s7")
    a("s_mul_i32 s7, s4, 448")
    a("s_add_u32 s3, s3, s7")
    a("v_add_u32 v6, s3, v1")
    a("v_lshlrev_b32 v6, 4, v6")
    a("v_add_u32 v5, 1, v2")
    a("v_mul_u32_u24 v5, 7168, v5")
    a("v_sub_u32 v5, v6, v5")
    srd(a, 20, P_WS, E_BYTES, WS_E)
    a("s_add_u32 s3, s4, 1")
    a("v_sub_u32 v7, s3, v2")
    a("v_and_b32 v7, -2, v7")
    a("s_waitcnt lgkmcnt(0)")
    stamp(a, "pass1")
    a("s_barrier")
    EE = VT+12
    for sg in range(8):
        a("ds_read_b64 %s, v3 offset:%d" % (vr(EE+2*sg, 2), 512*sg))
    a("s_waitcnt lgkmcnt(0)")
    for sg in range(1, 8):
        cfma(a, EE+2*sg, VL16, EE+2*(sg-1), EE+2*sg)
    a("s_lshr_b32 s7, s6, 1")
    a("s_cmp_eq_u32 s7, 0")
    a("s_cbranch_scc0 %s_nopub" % P)
    a("v_mov_b32 v%d, v%d" % (VT, EE+14))
    a("v_mov_b32 v%d, 1" % (VT+1))
    a("v_mov_b32 v%d, v%d" % (VT+2, EE+15))
    a("v_mov_b32 v%d, 1" % (VT+3))
    a("s_mov_b64 exec, s[50:51]")
    a("buffer_store_dwordx4 %s, v6, s[20:23], 0 offen sc1" % vr(VT, 4))
    a("s_mov_b64 exec, -1")
    a.label("%s_nopub" % P)
    stamp(a, "Epub")
    SO0, SO1 = VT+8, VT+10
    a("s_lshr_b32 s7, s6, 1")
    a("s_cmp_eq_u32 s7, 0")
    a("s_cbranch_scc0 %s_th1" % P)
    a("v_cndmask_b32 v%d, v%d, 0, s[50:51]" % (SO0, EE+2))
    a("v_cndmask_b32 v%d, v%d, 0, s[50:51]" % (SO0+1, EE+3))
    a("v_cndmask_b32 v%d, v%d, v%d, s[50:51]" % (SO1, EE+4, EE+0))
    a("v_cndmask_b32 v%d, v%d, v%d, s[50:51]" % (SO1+1, EE+5, EE+1))
    a("s_branch %s_thj" % P)
    a.label("%s_th1" % P)
    a("v_cndmask_b32 v%d, v%d, v%d, s[50:51]" % (SO0, EE+10, EE+6))
    a("v_cndmask_b32 v%d, v%d, v%d, s[50:51]" % (SO0+1, EE+11, EE+7))
    a("v_cndmask_b32 v%d, v%d, v%d, s[50:51]" % (SO1, EE+12, EE+8))
    a("v_cndmask_b32 v%d, v%d, v%d, s[50:51]" % (SO1+1, EE+13, EE+9))
    a.label("%s_thj" % P)
    EL = VT+28
    a("s_mov_b32 s46, 0")
    a.label("%s_pe" % P)
    for i in range(8):
        if i == 0:
            a("buffer_load_dwordx4 %s, v5, s[20:23], 0 offen sc1" % vr(EL, 4))
        else:
            a("v_subrev_u32 v8, %d, v5" % (14336*i))
            a("buffer_load_dwordx4 %s, v8, s[20:23], 0 offen sc1" % vr(EL+4*i, 4))
    a("s_waitcnt vmcnt(0)")
    a("v_add_u32 v8, v%d, v%d" % (EL+1, EL+3))
    for i in range(1, 8):
        a("v_add3_u32 v8, v8, v%d, v%d" % (EL+4*i+1, EL+4*i+3))
    a("v_cmp_eq_u32 vcc, v8, v7")
    a("s_cmp_eq_u64 vcc, exec")
    a("s_cbranch_scc1 %s_pe_ok" % P)
    a("s_sleep 1")
    spin_guard(a, 46, "%s_pe" % P)
    a.label("%s_pe_ok" % P)
    a("s_barrier")
    stamp(a, "Egot")
    for i in range(8):
        a("v_mov_b32 v%d, v%d" % (EL+4*i+1, EL+4*i+2))
    cur = EL + 4*7
    for i in range(6, -1, -1):
        cfma(a, EL+4*i, VL256, cur, EL+4*i)
        cur = EL+4*i
    HA, HB = VT, VT+2
    a("v_mov_b32 v%d, v%d" % (HA, cur))
    a("v_mov_b32 v%d, v%d" % (HA+1, cur+1))
    a("v_mov_b32 v%d, v%d" % (HB, cur))
    a("v_mov_b32 v%d, v%d" % (HB+1, cur+1))
    a("v_permlane32_swap_b32 v%d, v%d" % (HA, HB))
    a("v_permlane32_swap_b32 v%d, v%d" % (HA+1, HB+1))
    HH = VT+4
    cfma(a, HH, VL128, HB, HA)
    cfma(a, SO0, VW0, HH, SO0)
    cfma(a, SO1, VW1, HH, SO1)
    HP = VT
    a("v_mov_b32 v%d, v%d" % (HP, SO0))
    a("v_mov_b32 v%d, v%d" % (HP+1, SO1))
    a("v_mov_b32 v%d, v%d" % (HP+2, SO0+1))
    a("v_mov_b32 v%d, v%d" % (HP+3, SO1+1))
    stamp(a, "carry")
    OUTR, OUTI = VT+12, VT+28
    T1, T2 = VT+4, VT+6
    for pos in range(16):
        pr = HP if pos == 0 else pair(0, pos-1)
        pi = HP+2 if pos == 0 else pair(1, pos-1)
        br, bi = pair(0, pos), pair(1, pos)
        a("v_pk_fma_f32 %s, %s, %s, %s op_sel:[0,0,0] op_sel_hi:[0,1,1]" % (vr(br,2), vr(VL,2), vr(pr,2), vr(br,2)))
        a("v_pk_fma_f32 %s, %s, %s, %s op_sel:[0,0,0] op_sel_hi:[0,1,1]" % (vr(bi,2), vr(VL,2), vr(pi,2), vr(bi,2)))
        a("v_pk_fma_f32 %s, %s, %s, %s op_sel:[1,0,0] op_sel_hi:[1,1,1] neg_lo:[1,0,0] neg_hi:[1,0,0]" % (vr(br,2), vr(VL,2), vr(pi,2), vr(br,2)))
        a("v_pk_fma_f32 %s, %s, %s, %s op_sel:[1,0,0] op_sel_hi:[1,1,1]" % (vr(bi,2), vr(VL,2), vr(pr,2), vr(bi,2)))
        a("v_pk_mul_f32 %s, %s, %s op_sel:[0,0] op_sel_hi:[0,1]" % (vr(T1,2), vr(VG,2), vr(br,2)))
        a("v_pk_mul_f32 %s, %s, %s op_sel:[0,0] op_sel_hi:[0,1] neg_lo:[1,0] neg_hi:[1,0]" % (vr(T2,2), vr(VG,2), vr(bi,2)))
        a("v_pk_fma_f32 %s, %s, %s, %s op_sel:[1,0,0] op_sel_hi:[1,1,1] neg_lo:[1,0,0] neg_hi:[1,0,0]" % (vr(T1,2), vr(VG,2), vr(bi,2), vr(T1,2)))
        a("v_pk_fma_f32 %s, %s, %s, %s op_sel:[1,0,0] op_sel_hi:[1,1,1] neg_lo:[1,0,0] neg_hi:[1,0,0]" % (vr(T2,2), vr(VG,2), vr(br,2), vr(T2,2)))
        a("v_cvt_pk_bf16_f32 v%d, v%d, v%d" % (OUTR+pos, T1, T1+1))
        a("v_cvt_pk_bf16_f32 v%d, v%d, v%d" % (OUTI+pos, T2, T2+1))
    stamp(a, "pass2")
    a("s_mul_i32 s3, s6, 9216")
    a("s_add_u32 s3, s3, %d" % L_TR)
    a("v_and_b32 v1, 31, v0")
    a("v_lshrrev_b32 v2, 5, v0")
    a("v_mul_u32_u24 v3, 144, v1")
    a("v_lshlrev_b32 v4, 6, v2")
    a("v_add_u32 v3, v3, v4")
    a("v_add_u32 v3, s3, v3")
    for part in range(2):
        for q in range(4):
            a("ds_write_b128 v3, %s offset:%d" % (vr((OUTR, OUTI)[part]+4*q, 4), part*4608 + 16*q))
    a("v_lshrrev_b32 v4, 4, v0")
    a("v_and_b32 v5, 1, v4")
    a("v_lshrrev_b32 v4, 1, v4")
    a("v_and_b32 v6, 15, v0")
    a("v_lshrrev_b32 v6, 2, v6")
    a("v_and_b32 v7, 3, v0")
    a("v_lshlrev_b32 v4, 3, v4")
    a("v_add_u32 v4, v4, v6")
    a("v_mul_u32_u24 v4, 144, v4")
    a("v_lshlrev_b32 v5, 5, v5")
    a("v_lshlrev_b32 v7, 3, v7")
    a("v_add_u32 v4, v4, v5")
    a("v_add_u32 v4, v4, v7")
    a("v_add_u32 v4, s3, v4")
    srd(a, 16, P_WS, WS_SIZE)
    a("s_lshr_b32 s7, s6, 1")
    a("s_lshl_b32 s7, s7, 1")
    a("s_lshl_b32 s3, s4, 2")
    a("s_add_u32 s3, s3, s7")
    a("s_mul_i32 s3, s3, 56")
    a("s_lshl_b32 s7, s5, 3")
    a("s_add_u32 s3, s3, s7")
    a("s_and_b32 s7, s6, 1")
    a("s_lshl_b32 s7, s7, 1")
    a("s_add_u32 s3, s3, s7")
    a("s_lshl_b32 s3, s3, 10")
    a("s_add_u32 s44, s3, 0x%x" % WS_U)
    a("v_lshlrev_b32 v5, 4, v0")
    FR = 64
    n = 0
    for part in range(2):
        for T in range(2):
            for sub in range(2):
                for rd in range(2):
                    a("ds_read_b64_tr_b16 %s, v4 offset:%d" % (vr(FR+4*n+2*rd, 2), part*4608 + (16*sub+4*rd)*144 + 64*T))
                n += 1
    n = 0
    for part in range(2):
        for T in range(2):
            for sub in range(2):
                a("s_add_u32 s45, s44, %d" % ((T*56 + 4*part + sub)*1024))
                a("s_waitcnt lgkmcnt(%d)" % min(15, 2*(7-n)))
                a("buffer_store_dwordx4 %s, v5, s[16:19], s45 offen sc1" % vr(FR+4*n, 4))
                n += 1
    stamp(a, "ust")
    a2_prep(a, P)
    a("s_mul_i32 s3, s4, 28")
    a("s_lshl_b32 s7, s5, 2")
    a("s_add_u32 s3, s3, s7")
    a("s_add_u32 s3, s3, s6")
    a("s_lshl_b32 s3, s3, 7")
    a("s_add_u32 s45, s3, 0x%x" % WS_FU)
    a("v_mov_b32 v8, 0")
    a("v_mov_b32 v9, 1")
    a("s_waitcnt vmcnt(6)")
    a("s_mov_b64 exec, 1")
    a("buffer_store_dword v9, v8, s[16:19], s45 offen sc1")
    a("s_mov_b64 exec, -1")
    stamp(a, "uflag")
    a2_main(a, P)

A2_NB = 24
UF = 64
A2ACC = 16
CF = 48
XS = 160
DF = 176
AC = 192

def a2_prep(a, P):
    a("v_and_b32 v1, 31, v0")
    a("v_lshrrev_b32 v2, 5, v0")
    srd(a, 8, P_XA, X_BYTES)
    srd(a, 12, P_OUT, OUT_BYTES)
    a("v_and_b32 v3, 1, v1")
    a("v_lshlrev_b32 v3, 4, v3")
    a("v_lshrrev_b32 v4, 1, v1")
    a("v_add_u32 v3, v3, v4")
    a("s_lshl_b32 s3, s4, 7")
    a("s_lshl_b32 s7, s6, 5")
    a("s_add_u32 s3, s3, s7")
    a("v_add_u32 v3, s3, v3")
    a("v_mul_u32_u24 v4, 896, v3")
    a("v_lshlrev_b32 v6, 4, v2")
    a("v_add_u32 v4, v4, v6")
    a("s_lshl_b32 s7, s5, 7")
    a("v_add_u32 v4, s7, v4")
    for s in range(4):
        a("buffer_load_dwordx4 %s, v4, s[8:11], 0 offen offset:%d" % (vr(XS+4*s, 4), 32*s))
    a("s_lshl_b32 s7, s5, 6")
    a("v_add_u32 v6, s7, v1")
    a("v_lshlrev_b32 v6, 1, v6")
    a("global_load_ushort v10, v6, s[%d:%d]" % (P_DSK, P_DSK+1))
    a("global_load_ushort v11, v6, s[%d:%d] offset:64" % (P_DSK, P_DSK+1))
    a("v_lshrrev_b32 v7, 1, v1")
    a("v_and_b32 v7, 7, v7")
    a("v_lshlrev_b32 v8, 7, v1")
    for sub in range(4):
        a("v_add_u32 v9, %d, v2" % (2*sub))
        a("v_xor_b32 v9, v9, v7")
        a("v_lshlrev_b32 v9, 4, v9")
        a("v_add_u32 v%d, v9, v8" % (AC+sub))
        a("v_add_u32 v%d, %d, v%d" % (AC+4+sub, 57344, AC+sub))

def a2_main(a, P):
    a.c("---- y GEMM ----")
    a("s_waitcnt vmcnt(1)")
    a("v_lshlrev_b32 v9, 3, v2")
    a("v_sub_u32 v9, v1, v9")
    for nt in range(2):
        a("v_lshlrev_b32 v12, 16, v%d" % (10+nt))
        for sp in range(2):
            for q in range(4):
                d = DF + 4*(2*nt+sp) + q
                a("v_cmp_eq_u32 vcc, %d, v9" % (16*sp + 2*q))
                a("v_cndmask_b32 v%d, 0, v%d, vcc" % (d, 10+nt))
                a("v_cmp_eq_u32 vcc, %d, v9" % (16*sp + 2*q + 1))
                a("v_cndmask_b32 v%d, v%d, v12, vcc" % (d, d))
    for nt in range(2):
        mfma(a, A2ACC+16*nt, XS+4*(2*nt), DF+4*(2*nt), None)
        mfma(a, A2ACC+16*nt, XS+4*(2*nt+1), DF+4*(2*nt+1), A2ACC+16*nt)
    a("s_barrier")
    stamp(a, "BX2")
    a("s_mul_i32 s3, s4, %d" % (28*128))
    a("s_add_u32 s45, s3, 0x%x" % WS_FU)
    a("v_lshlrev_b32 v8, 7, v0")
    a("v_and_b32 v9, 3, v0")
    a("v_lshrrev_b32 v9, 1, v9")
    a("s_lshr_b32 s7, s6, 1")
    a("v_cmp_eq_u32 vcc, s7, v9")
    a("v_cmp_gt_u32 s[42:43], 28, v0")
    a("s_and_b64 s[42:43], s[42:43], vcc")
    a("s_mov_b64 exec, s[42:43]")
    a("s_mov_b32 s46, 0")
    a.label("%s_pu" % P)
    a("buffer_load_dword v9, v8, s[16:19], s45 offen sc1")
    a("s_waitcnt vmcnt(0)")
    a("v_cmp_ne_u32 vcc, 0, v9")
    a("s_cmp_eq_u64 vcc, exec")
    a("s_cbranch_scc1 %s_pu_ok" % P)
    a("s_sleep 1")
    spin_guard(a, 46, "%s_pu" % P)
    a.label("%s_pu_ok" % P)
    a("s_mov_b64 exec, -1")
    stamp(a, "uready")
    a("v_lshlrev_b32 v5, 4, v0")
    a("s_lshl_b32 s3, s4, 2")
    a("s_add_u32 s3, s3, s6")
    a("s_mul_i32 s3, s3, %d" % (56*1024))
    a("s_add_u32 s44, s3, 0x%x" % WS_U)
    def uload(f):
        a("s_add_u32 s45, s44, %d" % (f*1024))
        a("buffer_load_dwordx4 %s, v5, s[16:19], s45 offen sc1" % vr(UF+4*(f % A2_NB), 4))
    for f in range(A2_NB): uload(f)
    def creads(f):
        g, part, sub = f >> 3, (f >> 2) & 1, f & 3
        blk = part*7 + g
        off = blk*8192
        reg = AC + sub
        if off >= 57344:
            off -= 57344; reg += 4
        for nt in range(2):
            a("ds_read_b128 %s, v%d offset:%d" % (vr(CF+8*(f & 1)+4*nt, 4), reg, off + nt*4096))
    creads(0)
    for f in range(56):
        if f+1 < 56: creads(f+1)
        issued = min(f + A2_NB, 56)
        a("s_waitcnt vmcnt(%d) lgkmcnt(%d)" % (issued - f - 1, 2 if f+1 < 56 else 0))
        for nt in range(2):
            mfma(a, A2ACC+16*nt, UF+4*(f % A2_NB), CF+8*(f & 1)+4*nt, A2ACC+16*nt)
        if f + A2_NB < 56: uload(f + A2_NB)
    stamp(a, "gemm2")
    a("s_lshl_b32 s3, s4, 7")
    a("s_lshl_b32 s7, s6, 5")
    a("s_add_u32 s3, s3, s7")
    a("s_mul_i32 s3, s3, 3584")
    a("s_lshl_b32 s7, s5, 8")
    a("s_add_u32 s44, s3, s7")
    a("v_mul_u32_u24 v3, %d, v2" % (2*3584))
    a("v_lshlrev_b32 v4, 2, v1")
    a("v_add_u32 v3, v3, v4")
    for rho in range(16):
        k, r = rho >> 2, rho & 3
        toff = 16*(r & 1) + 4*k + (r >> 1)
        a("s_add_u32 s45, s44, %d" % (toff*3584))
        for nt in range(2):
            a("buffer_store_dword v%d, v3, s[12:15], s45 offen offset:%d" % (A2ACC+16*nt+rho, 128*nt))
    stamp(a, "stored")
```

```python
from common import *
from fa import krot, knext

L_X = 0
L_W = 114688
L_RED = L_W + 5*8192
QSUB = [2, 3, 4, 0, 1, 2, 3]
L_WO = 0
L_KVB = 65536

def b_loader(a, P):
    stamp_role("B ld")
    a.c("---- B loader ----")
    a("s_sub_u32 s7, s6, 4")
    a("v_lshrrev_b32 v1, 3, v0")
    a("v_and_b32 v2, 7, v0")
    a("v_lshrrev_b32 v3, 1, v1")
    a("v_xor_b32 v4, v2, v3")
    a("v_xor_b32 v5, 4, v4")
    a("v_lshlrev_b32 v4, 4, v4")
    a("v_lshlrev_b32 v5, 4, v5")
    a("s_lshl_b32 s3, s4, 7")
    a("s_lshl_b32 s40, s7, 5")
    a("s_add_u32 s3, s3, s40")
    a("v_add_u32 v6, s3, v1")
    a("v_mul_u32_u24 v6, 896, v6")
    for q in range(4):
        a("v_add_u32 v%d, %d, v6" % (10+q, 8*q*896))
        a("v_add_u32 v%d, v%d, v%d" % (10+q, 10+q, 4+(q & 1)))
    a("v_and_b32 v7, 1, v3")
    a("v_lshlrev_b32 v7, 2, v7")
    a("v_xor_b32 v7, v7, v2")
    a("v_lshlrev_b32 v7, 4, v7")
    a("s_lshl_b32 s3, s7, 4")
    a("v_add_u32 v6, s3, v1")
    a("v_mul_u32_u24 v6, 2688, v6")
    a("v_add_u32 v6, v6, v7")
    a("s_mul_i32 s3, s5, 112")
    a("v_add_u32 v14, s3, v6")
    a("s_lshl_b32 s3, s7, 3")
    a("v_add_u32 v8, s3, v1")
    a("v_mul_u32_u24 v9, 896, v8")
    a("v_add_u32 v9, v9, v7")
    a("s_lshl_b32 s3, s5, 7")
    a("v_add_u32 v9, s3, v9")
    a("v_mov_b32 v15, 0x7fffff00")
    a("v_cmp_lt_u32 vcc, 27, v8")
    a("v_cndmask_b32 v15, v9, v15, vcc")
    a("s_lshl_b32 s40, s7, 12")
    a("s_lshl_b32 s49, s7, 11")
    krot(a, 4, 5)
    a("s_mov_b32 s54, s47")
    a("s_waitcnt lgkmcnt(0)")
    srd(a, 8, P_XB, X_BYTES)
    srd(a, 12, P_WQKV, WQKV_BYTES)
    stamp(a, "setup")
    def issue(i):
        slot = i % 3
        a("s_lshl_b32 s41, s47, 7")
        a("s_mul_i32 s48, s47, %d" % (64*2688))
        knext(a)
        for q in range(4):
            a("s_add_u32 m0, s40, %d" % (L_X + i*16384 + q*1024))
            a("s_nop 0")
            a("buffer_load_dwordx4 v%d, s[8:11], s41 offen lds" % (10+q))
        for sec in (1, 2):
            for q in range(2):
                a("s_add_u32 m0, s49, %d" % (L_W + slot*16384 + (sec-1)*8192 + q*1024))
                a("s_add_u32 s41, s48, %d" % (q*8*2688 + sec*896))
                a("buffer_load_dwordx4 v14, s[12:15], s41 offen lds")
    def issue_q(i):
        a("s_mul_i32 s48, s47, %d" % (64*2688))
        knext(a)
        for q in range(2):
            a("s_add_u32 m0, s49, %d" % (L_W + QSUB[i]*8192 + q*1024))
            a("s_add_u32 s41, s48, %d" % (q*8*2688))
            a("buffer_load_dwordx4 v14, s[12:15], s41 offen lds")
    issued = 0
    issue(0); issued += 1
    if Opt.pf: a("s_barrier")
    for i in range(1, Opt.la0):
        issue(i); issued += 1
    for s in range(7):
        a("s_waitcnt vmcnt(%d)" % (8*(issued - 1 - s)))
        stamp(a, "land%d" % s)
        a("s_barrier")
        while issued < 7 and issued <= s + 2:
            issue(issued); issued += 1
    a("s_mov_b32 s47, s54")
    for i in range(3): issue_q(i)
    poll_zero_done(a, P)
    stamp(a, "zd")
    a("s_barrier")
    issue_q(3); issue_q(4)
    a("s_waitcnt vmcnt(4)")
    a("s_barrier")
    a("s_waitcnt vmcnt(2)")
    a("s_barrier")
    issue_q(5); issue_q(6)
    a("s_waitcnt vmcnt(2)")
    a("s_barrier")
    a("s_waitcnt vmcnt(0)")
    a("s_barrier")
    stamp(a, "BQ3")
    a("s_barrier")
    a("s_cmp_eq_u32 s5, 7")
    a("s_cbranch_scc1 %s_noWo" % P)
    srd(a, 8, P_WO, W_BYTES)
    a("s_lshl_b32 s40, s7, 10")
    for h in range(16):
        a("s_mov_b32 s41, %d" % (h*28*896))
        a("s_add_u32 m0, s40, %d" % (L_WO + h*4096))
        a("s_nop 0")
        a("buffer_load_dwordx4 v15, s[8:11], s41 offen lds")
    a.label("%s_noWo" % P)
    stamp(a, "Wo issued")
    a("s_barrier")
    a("s_cmp_eq_u32 s5, 7")
    a("s_cbranch_scc1 %s_end" % P)
    srd(a, 16, P_WS, WS_SIZE)
    a("s_cmp_eq_u32 s6, 4")
    a("s_cbranch_scc0 %s_nopoll" % P)
    a("v_lshlrev_b32 v20, 7, v0")
    a("s_mov_b32 s45, 0x%x" % WS_FB)
    a("s_mov_b32 s48, 0x%x" % (WS_FB + 8192))
    a("s_mov_b32 s46, 0")
    a.label("%s_pb" % P)
    a("buffer_load_dword v22, v20, s[16:19], s45 offen sc1")
    a("buffer_load_dword v23, v20, s[16:19], s48 offen sc1")
    a("s_waitcnt vmcnt(0)")
    a("v_and_b32 v22, v22, v23")
    a("v_cmp_ne_u32 vcc, 0, v22")
    a("s_cmp_eq_u64 vcc, exec")
    a("s_cbranch_scc1 %s_nopoll" % P)
    a("s_sleep 1")
    spin_guard(a, 46, "%s_pb" % P)
    a.label("%s_nopoll" % P)
    stamp(a, "polled")
    a("s_barrier")
    a("v_lshlrev_b32 v5, 4, v0")
    a("s_lshl_b32 s3, s7, 14")
    a("s_add_u32 s44, s3, 0x%x" % WS_KV)
    for hh in range(4):
        for q in range(4):
            a("s_add_u32 s45, s44, %d" % (hh*4096 + q*1024))
            a("buffer_load_dwordx4 %s, v5, s[16:19], s45 offen sc1" % vr(32+16*hh+4*q, 4))
    a("v_lshrrev_b32 v6, 3, v0")
    a("v_and_b32 v6, 1, v6")
    a("v_lshlrev_b32 v6, 2, v6")
    a("v_lshrrev_b32 v7, 4, v0")
    a("v_add_u32 v6, v6, v7")
    a("v_lshlrev_b32 v6, 6, v6")
    a("v_and_b32 v7, 7, v0")
    a("v_lshlrev_b32 v7, 3, v7")
    a("v_add_u32 v6, v6, v7")
    a("s_lshl_b32 s3, s7, 13")
    a("s_add_u32 s3, s3, %d" % L_KVB)
    a("v_add_u32 v6, s3, v6")
    for hh in range(4):
        for q in range(4):
            r = 32+16*hh+4*q
            a("s_waitcnt vmcnt(%d)" % (15 - 4*hh - q))
            a("v_cvt_pk_bf16_f32 v%d, v%d, v%d" % (r, r, r+1))
            a("v_cvt_pk_bf16_f32 v%d, v%d, v%d" % (r+1, r+2, r+3))
            a("ds_write_b64 v6, %s offset:%d" % (vr(r, 2), hh*2048 + q*512))
    a("s_waitcnt vmcnt(0) lgkmcnt(0)")
    stamp(a, "kvimg")
    a("s_barrier")
    a.label("%s_end" % P)

AX = 16
AW = 20
AXS, AWS = 21, 25
FX = 32
KK, VV = 64, 96
KV = 128
QT = 64
VT = 144

def b_prefetch(a):
    srd(a, 8, P_XB, X_BYTES)
    srd(a, 12, P_WQKV, WQKV_BYTES)
    srd(a, 24, P_WO, W_BYTES)
    a("s_and_b32 s3, s4, 3")
    a("s_lshl_b32 s3, s3, 3")
    a("s_add_u32 s28, s3, s5")
    a("v_mov_b32 v6, 0x%x" % OOB)
    a("s_lshl_b32 s3, s4, 7")
    a("s_lshl_b32 s7, s5, 4")
    a("s_add_u32 s3, s3, s7")
    a("v_add_u32 v5, s3, v0")
    a("v_mul_u32_u24 v5, 896, v5")
    a("v_cmp_gt_u32 vcc, 16, v0")
    a("v_cndmask_b32 v5, v6, v5, vcc")
    a("v_cmp_le_u32 vcc, 14, v0")
    a("v_cndmask_b32 v7, 0, 1, vcc")
    a("v_mul_u32_u24 v8, 14, v7")
    a("v_sub_u32 v8, v0, v8")
    a("v_lshlrev_b32 v8, 7, v8")
    a("s_lshl_b32 s3, s28, 1")
    a("v_add_u32 v7, s3, v7")
    a("v_mul_u32_u24 v7, 2688, v7")
    a("v_add_u32 v7, v7, v8")
    a("v_add_u32 v7, 896, v7")
    a("v_cmp_gt_u32 vcc, 28, v0")
    a("v_cndmask_b32 v7, v6, v7, vcc")
    a("s_barrier")
    a("s_cmp_eq_u32 s6, 0")
    a("s_cbranch_scc0 LB_nopf")
    for st in range(1, 7):
        a("s_movk_i32 s41, %d" % (128*st))
        a("buffer_load_dword v%d, v5, s[8:11], s41 offen" % VDUMMY)
        a("s_mov_b32 s41, %d" % (st*64*2688))
        a("buffer_load_dword v%d, v7, s[12:15], s41 offen" % VDUMMY)
    a.label("LB_nopf")
    a("v_mul_u32_u24 v8, 37, v0")
    a("v_lshrrev_b32 v8, 8, v8")
    a("v_mul_u32_u24 v9, 7, v8")
    a("v_sub_u32 v9, v0, v9")
    a("v_lshlrev_b32 v9, 7, v9")
    a("s_mul_i32 s3, s28, 14")
    a("s_and_b32 s7, s6, 1")
    a("s_mul_i32 s7, s7, 7")
    a("s_add_u32 s3, s3, s7")
    a("v_add_u32 v8, s3, v8")
    a("s_movk_i32 s29, 896")
    a("s_cmp_lt_u32 s6, 2")
    a("s_cselect_b32 s29, 2688, s29")
    a("v_mul_lo_u32 v8, v8, s29")
    a("v_add_u32 v8, v8, v9")
    a("v_cmp_gt_u32 vcc, 49, v0")
    a("v_cndmask_b32 v15, v6, v8, vcc")
    a("s_cmp_lt_u32 s6, 2")
    a("s_cselect_b32 s24, s%d, s24" % P_WQKV)
    a("s_cselect_b32 s25, s%d, s25" % (P_WQKV+1))
    a("s_cselect_b32 s26, 0x%x, s26" % WQKV_BYTES)
    return {2: ["buffer_load_dword v%d, v15, s[24:27], 0 offen" % VDUMMY]}

def b_compute(a, P):
    stamp_role("B cmp")
    a.c("---- B compute ----")
    a("v_and_b32 v1, 31, v0")
    a("v_lshrrev_b32 v2, 5, v0")
    a("v_lshrrev_b32 v3, 1, v1")
    a("v_and_b32 v3, 7, v3")
    a("s_lshr_b32 s7, s6, 1")
    a("s_lshl_b32 s7, s7, 13")
    a("v_lshlrev_b32 v4, 7, v1")
    for ks in range(4):
        a("v_add_u32 v5, %d, v2" % (2*ks))
        a("v_xor_b32 v5, v5, v3")
        a("v_lshlrev_b32 v5, 4, v5")
        a("v_add_u32 v5, v5, v4")
        a("v_add_u32 v%d, s7, v5" % (AX+ks))
    a("v_lshrrev_b32 v4, 4, v0")
    a("v_and_b32 v5, 1, v4")
    a("v_lshrrev_b32 v4, 1, v4")
    a("v_and_b32 v6, 15, v0")
    a("v_lshrrev_b32 v6, 2, v6")
    a("v_and_b32 v7, 3, v0")
    a("v_lshlrev_b32 v4, 3, v4")
    a("v_add_u32 v4, v4, v6")
    a("v_lshlrev_b32 v4, 7, v4")
    a("v_lshlrev_b32 v5, 5, v5")
    a("v_lshlrev_b32 v7, 3, v7")
    a("v_add_u32 v5, v5, v7")
    a("s_and_b32 s3, s6, 1")
    a("s_mul_i32 s3, s3, 56")
    a("v_add_u32 v5, s3, v5")
    a("v_lshrrev_b32 v6, 1, v6")
    a("v_lshlrev_b32 v6, 6, v6")
    a("v_xor_b32 v5, v5, v6")
    a("v_add_u32 v4, v4, v5")
    a("v_add_u32 v%d, %d, v4" % (AW, L_W))
    def setx(i):
        for ks in range(4):
            a("v_add_u32 v%d, %d, v%d" % (AXS+ks, L_X + i*16384, AX+ks))
    def reads(i, ks):
        b = (4*i + ks) & 1
        f = FX + 16*b
        for m in range(2):
            a("ds_read_b128 %s, v%d offset:%d" % (vr(f+4*m, 4), AXS+ks, m*4096))
        for sec in range(2):
            for rd in range(2):
                a("ds_read_b64_tr_b16 %s, v%d offset:%d" % (vr(f+8+4*sec+2*rd, 2), AW, (i % 3)*16384 + sec*8192 + ks*2048 + rd*512))
    def mm(i, ks):
        b = (4*i + ks) & 1
        f = FX + 16*b
        first = (i == 0 and ks == 0)
        for m in range(2):
            mfma(a, KK+16*m, f+4*m, f+8, None if first else KK+16*m)
            mfma(a, VV+16*m, f+4*m, f+12, None if first else VV+16*m)
    a("s_waitcnt lgkmcnt(0)")
    setx(0)
    a("s_mov_b32 s50, 0x%x" % LOG2E)
    a("s_mov_b32 s51, 0x%x" % LOG2E)
    a("s_mov_b32 s52, 0x358637bd")
    a("v_and_b32 v1, 31, v0")
    a("v_cmp_lt_u32 s[54:55], 27, v1")
    a("v_cmp_eq_u32 vcc, 28, v1")
    a("v_mov_b32 v12, 0")
    a("v_mov_b32 v3, 0x3f803f80")
    a("v_cndmask_b32 v12, v12, v3, vcc")
    a("s_mov_b32 s56, 0")
    a("s_mov_b32 s57, -1")
    srd(a, 16, P_WS, WS_SIZE)
    late = {}
    if Opt.pf: late = b_prefetch(a)
    stamp(a, "setup")
    a("s_barrier")
    stamp(a, "B0")
    reads(0, 0)
    for s in range(7):
        for ks in range(3):
            reads(s, ks+1)
            a("s_waitcnt lgkmcnt(6)")
            mm(s, ks)
        a("s_waitcnt lgkmcnt(0)")
        if s < 6:
            setx(s+1)
            a("s_barrier")
            reads(s+1, 0)
        for ln in late.get(s, []): a(ln)
        mm(s, 3)
    stamp(a, "gemm kv")
    T = VT
    def phi(base):
        for i in range(0, 16, 2):
            a("v_pk_mul_f32 %s, %s, s[50:51]" % (vr(T, 2), vr(base+i, 2)))
            a("v_max_f32 v%d, s52, v%d" % (base+i, base+i))
            a("v_max_f32 v%d, s52, v%d" % (base+i+1, base+i+1))
            a("v_exp_f32_e64 v%d, v%d clamp" % (T, T))
            a("v_exp_f32_e64 v%d, v%d clamp" % (T+1, T+1))
            a("v_pk_add_f32 %s, %s, %s" % (vr(T, 2), vr(T, 2), vr(base+i, 2)))
            a("v_cvt_pk_bf16_f32 v%d, v%d, v%d" % (base+i//2, T, T+1))
    for m in range(2):
        for i in range(8):
            a("v_cvt_pk_bf16_f32 v%d, v%d, v%d" % (VV+16*m+i, VV+16*m+2*i, VV+16*m+2*i+1))
            a("v_cndmask_b32 v%d, v%d, v12, s[54:55]" % (VV+16*m+i, VV+16*m+i))
        phi(KK+16*m)
        for s in range(2):
            mfma(a, KV, KK+16*m+4*s, VV+16*m+4*s, None if (m == 0 and s == 0) else KV)
    stamp(a, "kv mfma")
    a("s_and_b32 s3, s6, 1")
    a("s_lshl_b32 s3, s3, 12")
    a("s_add_u32 s3, s3, %d" % L_RED)
    a("v_lshlrev_b32 v7, 4, v0")
    a("v_add_u32 v7, s3, v7")
    a("s_lshr_b32 s7, s6, 1")
    a("s_cmp_eq_u32 s7, 0")
    a("s_cbranch_scc1 %s_r0" % P)
    for q in range(4):
        a("ds_write_b128 v7, %s offset:%d" % (vr(KV+4*q, 4), 1024*q))
    a("s_waitcnt lgkmcnt(0)")
    a("s_barrier")
    a("s_branch %s_r1" % P)
    a.label("%s_r0" % P)
    a("s_barrier")
    for q in range(4):
        a("ds_read_b128 %s, v7 offset:%d" % (vr(T+4*q, 4), 1024*q))
    a("s_lshl_b32 s3, s5, 1")
    a("s_and_b32 s7, s6, 1")
    a("s_add_u32 s3, s3, s7")
    a("s_lshl_b32 s3, s3, 12")
    a("s_add_u32 s44, s3, 0x%x" % WS_KV)
    a("v_lshlrev_b32 v5, 2, v0")
    a("s_waitcnt lgkmcnt(0)")
    for i in range(0, 16, 2):
        a("v_pk_add_f32 %s, %s, %s" % (vr(KV+i, 2), vr(KV+i, 2), vr(T+i, 2)))
    for rho in range(16):
        a("buffer_atomic_add_f32 v%d, v5, s[16:19], s44 offen offset:%d" % (KV+rho, 256*rho))
    a.label("%s_r1" % P)
    stamp(a, "atomics")
    def qreads(i, ks):
        b = (4*i + ks) & 1
        f = FX + 16*b
        for m in range(2):
            a("ds_read_b128 %s, v%d offset:%d" % (vr(f+4*m, 4), AXS+ks, m*4096))
        for rd in range(2):
            a("ds_read_b64_tr_b16 %s, v%d offset:%d" % (vr(f+8+2*rd, 2), AW, QSUB[i]*8192 + ks*2048 + rd*512))
    def qmm(i, ks):
        b = (4*i + ks) & 1
        f = FX + 16*b
        first = (i == 0 and ks == 0)
        for m in range(2):
            mfma(a, QT+16*m, f+8, f+4*m, None if first else QT+16*m)
    bars = {0: True, 2: True, 4: True, 6: True}
    setx(0)
    a("s_barrier")
    qreads(0, 0)
    for i in range(7):
        for ks in range(3):
            qreads(i, ks+1)
            a("s_waitcnt lgkmcnt(4)")
            qmm(i, ks)
        a("s_waitcnt lgkmcnt(0)")
        if i < 6:
            setx(i+1)
            if (i+1) in bars: a("s_barrier")
            qreads(i+1, 0)
        else:
            a("s_barrier")
        qmm(i, 3)
    stamp(a, "gemm q")
    a("s_lshr_b32 s7, s6, 1")
    a("s_lshl_b32 s7, s7, 1")
    a("s_lshl_b32 s3, s4, 2")
    a("s_add_u32 s3, s3, s7")
    a("s_lshl_b32 s3, s3, 4")
    a("s_lshl_b32 s7, s5, 1")
    a("s_add_u32 s3, s3, s7")
    a("s_and_b32 s7, s6, 1")
    a("s_add_u32 s3, s3, s7")
    a("s_lshl_b32 s3, s3, 11")
    a("s_add_u32 s44, s3, 0x%x" % WS_PQ)
    a("v_lshlrev_b32 v5, 4, v0")
    a("v_mov_b32 v6, 0")
    for m in range(2):
        phi(QT+16*m)
        a("v_cndmask_b32 v%d, v%d, v6, s[56:57]" % (QT+16*m+6, QT+16*m+6))
        a("v_cndmask_b32 v%d, v%d, v6, s[56:57]" % (QT+16*m+7, QT+16*m+7))
        for s in range(2):
            a("s_add_u32 s45, s44, %d" % (m*16*2048 + s*1024))
            a("buffer_store_dwordx4 %s, v5, s[16:19], s45 offen sc1" % vr(QT+16*m+4*s, 4))
    stamp(a, "pq st")
    b2_prep(a)
    a("s_waitcnt vmcnt(0)")
    stamp(a, "drained")
    a("s_barrier")
    a("s_cmp_eq_u32 s6, 0")
    a("s_cbranch_scc0 %s_nofl" % P)
    a("s_lshl_b32 s3, s4, 3")
    a("s_add_u32 s3, s3, s5")
    a("s_lshl_b32 s3, s3, 7")
    a("s_add_u32 s45, s3, 0x%x" % WS_FB)
    a("v_mov_b32 v8, 0")
    a("v_mov_b32 v9, 1")
    a("s_mov_b64 exec, 1")
    a("buffer_store_dword v9, v8, s[16:19], s45 offen sc1")
    a("s_mov_b64 exec, -1")
    a.label("%s_nofl" % P)
    a("s_cmp_eq_u32 s5, 7")
    a("s_cbranch_scc1 %s_end" % P)
    a("s_barrier")
    stamp(a, "BP")
    b2_main(a, P)
    a.label("%s_end" % P)

B2ACC = 16
KF = 48
PQ = 64
NPQ = 8
NPQ0 = 3
NUM = 128
OF = 160
WF = 176
A_KV, A_W0, A_W1 = 208, 209, 210

def b2_prep(a):
    srd(a, 20, P_OUT, OUT_BYTES)
    a("v_lshrrev_b32 v4, 4, v0")
    a("v_and_b32 v6, 1, v4")
    a("v_lshrrev_b32 v4, 1, v4")
    a("v_and_b32 v7, 15, v0")
    a("v_lshrrev_b32 v7, 2, v7")
    a("v_and_b32 v8, 3, v0")
    a("v_lshlrev_b32 v4, 2, v4")
    a("v_add_u32 v4, v4, v7")
    a("v_lshlrev_b32 v6, 5, v6")
    a("v_lshlrev_b32 v8, 3, v8")
    a("v_add_u32 v6, v6, v8")
    a("v_lshlrev_b32 v9, 6, v4")
    a("v_add_u32 v9, v9, v6")
    a("v_add_u32 v%d, %d, v9" % (A_KV, L_KVB))
    a("v_lshrrev_b32 v7, 1, v7")
    a("v_lshlrev_b32 v7, 6, v7")
    a("v_lshlrev_b32 v10, 7, v4")
    a("v_xor_b32 v11, v6, v7")
    a("v_add_u32 v%d, v11, v10" % A_W0)
    a("v_add_u32 v11, 64, v6")
    a("v_xor_b32 v11, v11, v7")
    a("v_add_u32 v%d, v11, v10" % A_W1)

def b2_main(a, P):
    a.c("---- read-out + output projection ----")
    a("v_lshlrev_b32 v5, 4, v0")
    a("s_lshl_b32 s3, s4, 2")
    a("s_add_u32 s3, s3, s6")
    a("s_lshl_b32 s3, s3, 15")
    a("s_add_u32 s44, s3, 0x%x" % WS_PQ)
    def pqload(h):
        for s in range(2):
            a("s_add_u32 s45, s44, %d" % (h*2048 + s*1024))
            a("buffer_load_dwordx4 %s, v5, s[16:19], s45 offen sc1" % vr(PQ+8*(h % NPQ)+4*s, 4))
    for h in range(NPQ0): pqload(h)
    a("s_barrier")
    for h in range(NPQ0, NPQ): pqload(h)
    stamp(a, "BC")
    def kvreads(h):
        for s in range(2):
            for rd in range(2):
                a("ds_read_b64_tr_b16 %s, v%d offset:%d" % (vr(KF+8*(h & 1)+4*s+2*rd, 2), A_KV, h*2048 + (16*s+8*rd)*64))
    def woreads(h):
        for s in range(2):
            for nt in range(2):
                for rd in range(2):
                    a("ds_read_b64_tr_b16 %s, v%d offset:%d" % (vr(WF+16*(h & 1)+4*(2*s+nt)+2*rd, 2), A_W0+nt, h*4096 + (16*s+8*rd)*128))
    def X(h):
        n = NUM + 16*(h & 1); k = KF + 8*(h & 1); p = PQ + 8*(h % NPQ)
        return ["v_mfma_f32_32x32x16_bf16 %s, %s, %s, 0" % (vr(n, 16), vr(k, 4), vr(p, 4)),
                "v_mfma_f32_32x32x16_bf16 %s, %s, %s, %s" % (vr(n, 16), vr(k+4, 4), vr(p+4, 4), vr(n, 16))]
    def Y(h):
        n = NUM + 16*(h & 1); o = OF + 8*(h & 1)
        L = ["v_mov_b32 v13, v%d" % (n+12), "v_mov_b32 v14, v%d" % (n+12), "s_nop 0",
             "v_permlane32_swap_b32 v13, v14", "v_add_f32 v14, s52, v14", "v_rcp_f32 v14, v14", "s_nop 0"]
        for i in range(0, 16, 2):
            L.append("v_pk_mul_f32 %s, %s, v[14:15] op_sel_hi:[1,0]" % (vr(n+i, 2), vr(n+i, 2)))
            L.append("v_cvt_pk_bf16_f32 v%d, v%d, v%d" % (o+i//2, n+i, n+i+1))
        return L
    def Z(h):
        o = OF + 8*(h & 1); w = WF + 16*(h & 1)
        L = []
        for s in range(2):
            for nt in range(2):
                c = "0" if (h == 0 and s == 0) else vr(B2ACC+16*nt, 16)
                L.append("v_mfma_f32_32x32x16_bf16 %s, %s, %s, %s" % (vr(B2ACC+16*nt, 16), vr(o+4*s, 4), vr(w+4*(2*s+nt), 4), c))
        return L
    kvreads(0); kvreads(1)
    issued = NPQ
    a("s_waitcnt vmcnt(%d) lgkmcnt(4)" % (2*(issued-1)))
    for m in X(0): a(m)
    for h in range(17):
        mf = []
        need = None
        if h+1 < 16:
            mf += X(h+1); need = h+1
        if h >= 1: mf += Z(h-1)
        va = Y(h) if h < 16 else []
        vm = 2*(issued - 1 - need) if need is not None else 0
        a("s_waitcnt vmcnt(%d) lgkmcnt(0)" % max(vm, 0))
        if h+2 < 16: kvreads(h+2)
        if h < 16: woreads(h)
        nm = len(mf)
        per = (len(va) + nm - 1)//nm if nm else len(va)
        for i, m in enumerate(mf):
            a(m)
            for _ in range(per):
                if va: a(va.pop(0))
        for v in va: a(v)
        if h + NPQ < 16:
            pqload(h + NPQ); issued += 1
    stamp(a, "gemm out")
    a("s_lshl_b32 s3, s4, 7")
    a("s_lshl_b32 s7, s6, 5")
    a("s_add_u32 s3, s3, s7")
    a("s_mul_i32 s3, s3, 3584")
    a("s_lshl_b32 s7, s5, 8")
    a("s_add_u32 s3, s3, s7")
    a("s_add_u32 s44, s3, 1792")
    a("v_lshrrev_b32 v2, 5, v0")
    a("v_and_b32 v1, 31, v0")
    a("v_mul_u32_u24 v3, %d, v2" % (4*3584))
    a("v_lshlrev_b32 v4, 2, v1")
    a("v_add_u32 v3, v3, v4")
    for rho in range(16):
        k, r = rho >> 2, rho & 3
        a("s_add_u32 s45, s44, %d" % ((8*k + r)*3584))
        for nt in range(2):
            a("buffer_store_dword v%d, v3, s[20:23], s45 offen offset:%d" % (B2ACC+16*nt+rho, 128*nt))
    stamp(a, "stored")

def helper(a, P):
    stamp_role("helper")
    a("s_waitcnt lgkmcnt(0)")
    srd(a, 16, P_WS, WS_ZEND)
    a("v_mov_b32 v4, 0")
    a("v_mov_b32 v5, 0")
    a("v_mov_b32 v6, 0")
    a("v_mov_b32 v7, 0")
    a("v_lshlrev_b32 v1, 4, v0")
    a("s_lshl_b32 s3, s5, 14")
    a("s_lshl_b32 s7, s6, 10")
    a("s_add_u32 s44, s3, s7")
    a("buffer_store_dwordx4 v[4:7], v1, s[16:19], s44 offen sc1")
    a("s_add_u32 s44, s44, 8192")
    a("buffer_store_dwordx4 v[4:7], v1, s[16:19], s44 offen sc1")
    a("s_waitcnt vmcnt(0)")
    a("s_barrier")
    a("s_cmp_eq_u32 s6, 0")
    a("s_cbranch_scc0 %s_end" % P)
    a("s_lshl_b32 s3, s5, 2")
    a("v_mov_b32 v2, s3")
    a("v_mov_b32 v3, 1")
    a("s_mov_b64 exec, 1")
    a("global_store_dword v2, v3, s[%d:%d] sc1" % (P_DBG, P_DBG+1))
    a("s_waitcnt vmcnt(0)")
    a.label("%s_end" % P)
```

```python
import sys
from common import *
from fa import *
from fb import *

def build(stamps=False):
    Stamps.enabled = stamps
    a = Asm()
    name = KNAME + "_kernel"
    a(".text")
    a(".globl %s" % name)
    a(".p2align 8")
    a(".type %s,@function" % name)
    a.label(name)
    if stamps:
        a("s_memtime s[98:99]")
        a("s_memrealtime s[94:95]")
    a("s_cmp_ge_u32 s2, 256")
    a("s_cbranch_scc1 L_exit")
    if Opt.codepf: a("s_getpc_b64 s[96:97]")
    a("s_load_dwordx16 s[64:79], s[0:1], 0")
    a("s_load_dwordx8 s[80:87], s[0:1], 64")
    a("s_load_dwordx4 s[88:91], s[0:1], 96")
    a("s_load_dwordx2 s[92:93], s[0:1], 112")
    if Opt.codepf:
        a("s_lshr_b32 s7, s2, 3")
        a("s_mul_i32 s7, s7, 9")
        a("v_add_u32 v2, s7, v0")
        a("v_lshlrev_b32 v2, 7, v2")
        a("s_mov_b32 s3, L_codeend-%s-128" % name)
        a("v_cmp_gt_u32 vcc, s3, v2")
        a("v_cmp_gt_u32 s[44:45], 9, v0")
        a("s_and_b64 vcc, vcc, s[44:45]")
        a("s_and_saveexec_b64 s[42:43], vcc")
        a("s_cbranch_execz L_nocp")
        a("global_load_dword v%d, v2, s[96:97]" % VDUMMY)
        a.label("L_nocp")
        a("s_mov_b64 exec, s[42:43]")
    a("v_lshrrev_b32 v1, 6, v0")
    a("v_and_b32 v0, 63, v0")
    a("v_readfirstlane_b32 s6, v1")
    if stamps:
        a("v_mov_b32 v%d, 0" % VSTAMP)
        stamp_rt(a)
    a("s_and_b32 s3, s2, 7")
    a("s_lshr_b32 s7, s2, 3")
    if Opt.b_first: a("s_xor_b32 s3, s3, 4")
    a("s_cmp_ge_u32 s3, 4")
    a("s_cbranch_scc1 L_B")
    a("s_cmp_ge_u32 s7, 28")
    a("s_cbranch_scc1 L_H")
    a("s_mul_i32 s46, s7, 37")
    a("s_lshr_b32 s46, s46, 8")
    a("s_mul_i32 s47, s46, 7")
    a("s_sub_u32 s5, s7, s47")
    a("s_lshl_b32 s4, s3, 2")
    a("s_add_u32 s4, s4, s46")
    a("s_cmp_ge_u32 s6, 4")
    a("s_cbranch_scc1 L_AL")
    a_compute(a, "LA")
    stamp_flush(a)
    a("s_endpgm")
    a.label("L_AL")
    a_loader(a, "LAL")
    stamp_flush(a)
    a("s_endpgm")
    a.label("L_H")
    a("s_lshl_b32 s5, s3, 2")
    a("s_add_u32 s5, s5, s7")
    a("s_sub_u32 s5, s5, 28")
    helper(a, "LH")
    a("s_endpgm")
    a.label("L_B")
    a("s_sub_u32 s3, s3, 4")
    a("s_lshl_b32 s4, s3, 2")
    a("s_lshr_b32 s46, s7, 3")
    a("s_add_u32 s4, s4, s46")
    a("s_and_b32 s5, s7, 7")
    a("s_cmp_ge_u32 s6, 4")
    a("s_cbranch_scc1 L_BL")
    b_compute(a, "LB")
    stamp_flush(a)
    a("s_endpgm")
    a.label("L_BL")
    b_loader(a, "LBL")
    stamp_flush(a)
    a.label("L_exit")
    a("s_endpgm")
    a.label("L_codeend")
    hdr = open("cdna_kernels/%s.s.ref" % KNAME).read().split("\n")
    hdr = [l for l in hdr if l.startswith(";   offset") or l.startswith("; Kernarg")]
    body = fix_hazards(a.lines, verbose=True)
    txt = "\n".join(hdr + ["; @launch grid=(256,1,1) block=(512,1,1) lds=163840"]) + "\n"
    txt += '.amdgcn_target "amdgcn-amd-amdhsa--gfx950"\n'
    txt += "\n".join(body) + "\n"
    txt += '.section .rodata,"a"\n.p2align 6\n' + descriptor(name)
    return txt

if __name__ == "__main__":
    out = sys.argv[1] if len(sys.argv) > 1 else "cdna_kernels/%s.s" % KNAME
    stamps = "st" in sys.argv[2:]
    for o in sys.argv[2:]:
        if "=" in o:
            k, v = o.split("="); setattr(Opt, k, int(v))
    open(out, "w").write(build(stamps))
    if stamps:
        import json
        json.dump(Stamps.names, open(out + ".names.json", "w"))
    print("wrote", out)
```
